```python
import torch

def _softmax(x, axis=-1):
    return torch.softmax(x, dim=axis)

def _gelu(x):
    return torch.nn.functional.gelu(x, approximate='tanh')

def _silu(x):
    return torch.nn.functional.silu(x)

def _sigmoid(x):
    return torch.sigmoid(x)

def _layernorm(x, axis=-1, eps=1e-05):
    m = x.mean(dim=axis, keepdim=True)
    v = x.var(dim=axis, keepdim=True, unbiased=False)
    return (x - m) / torch.sqrt(v + eps)

def _scatter_add(tgt, idx, src, axis=0):
    return tgt.clone().index_add_(axis, idx, src)

def _segment_sum(src, seg, n):
    out = torch.zeros((n,) + src.shape[1:], dtype=src.dtype)
    return out.index_add_(0, seg, src)

def _pad(x, pw):
    flat = tuple((v for pair in reversed(pw) for v in pair))
    return torch.nn.functional.pad(x, flat)
kernel_name = 'adaLN_cond__compressed_kv_cla__mixer_channel_mlp__decode'

def setup_inputs():

    _w = lambda a: (lambda t: t.to(torch.bfloat16) if t.is_floating_point() else t)(torch.as_tensor(a))

    def _A_setup():
        B, H, Sq, Sk, D, M = (1, 32, 1, 4096, 128, 512)
        Dc = 4 * D
        return {'x': _w((lambda *s: torch.randn(*s, dtype=torch.bfloat16) * 0.1)(B, Sq, M)), 'c_kv': _w((lambda *s: torch.randn(*s, dtype=torch.bfloat16) * 0.8)(B, Sk, Dc)), 'w_q': _w((lambda *s: torch.randn(*s, dtype=torch.bfloat16) * 0.8)(M, H, D) * M ** (-0.5)), 'w_uk': _w((lambda *s: torch.randn(*s, dtype=torch.bfloat16) * 0.8)(Dc, H, D) * Dc ** (-0.5)), 'w_uv': _w((lambda *s: torch.randn(*s, dtype=torch.bfloat16) * 0.8)(Dc, H, D) * Dc ** (-0.5)), 'w_o': _w((lambda *s: torch.randn(*s, dtype=torch.bfloat16) * 0.8)(H, D, M) * (H * D) ** (-0.5))}
    _A_in = _A_setup()

    def _B_setup():
        B, S, D, F = (1, 1, 512, 1376)
        return {'x': _w((lambda *s: torch.randn(*s, dtype=torch.bfloat16) * 0.1)(B, S, D)), 'w1': _w((lambda *s: torch.randn(*s, dtype=torch.bfloat16) * 3.2)(D, F) * D ** (-0.5)), 'b1': _w((lambda *s: torch.randn(*s, dtype=torch.bfloat16) * 3.2)(F)), 'w2': _w((lambda *s: torch.randn(*s, dtype=torch.bfloat16) * 3.2)(F, D) * F ** (-0.5)), 'b2': _w((lambda *s: torch.randn(*s, dtype=torch.bfloat16) * 3.2)(D))}
    _B_in = _B_setup()
    return {'A_x': _A_in['x'], 'A_c_kv': _A_in['c_kv'], 'A_w_q': _A_in['w_q'], 'A_w_uk': _A_in['w_uk'], 'A_w_uv': _A_in['w_uv'], 'A_w_o': _A_in['w_o'], 'B_x': _B_in['x'], 'B_w1': _B_in['w1'], 'B_b1': _B_in['b1'], 'B_w2': _B_in['w2'], 'B_b2': _B_in['b2'], 'c': _w((lambda *s: torch.randn(*s, dtype=torch.bfloat16) * 0.4)(1, 512) * 8.0), 'w_mod': _w((lambda *s: torch.randn(*s, dtype=torch.bfloat16) * 0.4)(512, 6 * 512) * 512 ** (-0.5) * 8.0)}

def reference(A_x, A_c_kv, A_w_q, A_w_uk, A_w_uv, A_w_o, B_x, B_w1, B_b1, B_w2, B_b2, c, w_mod):

    def _A_ref(x, c_kv, w_q, w_uk, w_uv, w_o):
        B, Sq, M = (x.shape[0], x.shape[1], x.shape[2])
        Sk = c_kv.shape[1]
        H, D = (w_q.shape[1], w_q.shape[2])
        q = torch.einsum('bqm,mhd->bhqd', x, w_q)
        k = torch.einsum('bkc,chd->bhkd', c_kv, w_uk)
        v = torch.einsum('bkc,chd->bhkd', c_kv, w_uv)
        scores = torch.einsum('bhqd,bhkd->bhqk', q, k) * D ** (-0.5)
        off = Sk - Sq
        qi = torch.arange(Sq)[:, None]
        kj = torch.arange(Sk)[None, :]
        cmask = kj <= qi + off
        scores = torch.where(cmask[None, None], scores, -1000000000.0)
        p = _softmax(scores, axis=-1)
        ctx = torch.einsum('bhqk,bhkd->bhqd', p, v)
        return torch.einsum('bhqd,hdm->bqm', ctx, w_o)

    def _B_ref(x, w1, b1, w2, b2):
        y = _layernorm(x, axis=-1)
        h = _gelu(torch.einsum('bsd,df->bsf', y, w1) + b1)
        return torch.einsum('bsf,fd->bsd', h, w2) + b2
    x = A_x
    mod = (_silu(c) @ w_mod).reshape(c.shape[0], 6, 1, -1)
    sa, ca, ga, sb, cb, gb = (mod[:, 0].clone(), mod[:, 1].clone(), mod[:, 2].clone(), mod[:, 3].clone(), mod[:, 4].clone(), mod[:, 5].clone())
    h = _layernorm(x, axis=-1) * (1 + ca) + sa
    x = x + ga * _A_ref(h, A_c_kv, A_w_q, A_w_uk, A_w_uv, A_w_o)
    h = _layernorm(x, axis=-1) * (1 + cb) + sb
    x = x + gb * _B_ref(h, B_w1, B_b1, B_w2, B_b2)
    return x
```

```python
import sys
NAME='adaLN_cond__compressed_kv_cla__mixer_channel_mlp__decode'
HDR=open('cdna_kernels/%s.s.ref'%NAME).read().split('\n')

MODP=0x0
QABS=0x10000
OUTACC=0x20000
O2ACC=0x24000
ZEND=0x28000
STAT=0x30000
PART=0x100000
WSBYTES=0x600000

NK=64
NH=512//NK
S=4096//NK

class A:
    def __init__(s): s.L=[]
    def __call__(s,x):
        for l in x.strip('\n').split('\n'): s.L.append('    '+l.strip())
    def label(s,x): s.L.append(x+':')
    def nop(s,n):
        while n>0:
            k=min(n,16); s('s_nop %d'%(k-1)); n-=k
a=A()

def srd(d,lo,hi,nbytes):
    a(f's_mov_b32 s{d}, s{lo}\ns_mov_b32 s{d+1}, s{hi}\ns_mov_b32 s{d+2}, {nbytes}\ns_mov_b32 s{d+3}, 0x20000')

def dpp(op,d,s0,s1,ctl):
    a(f'{op}_dpp v{d}, v{s0}, v{s1} {ctl} row_mask:0xf bank_mask:0xf')

def wave_allreduce(op, regs, tmps):
    for ctl in ['row_ror:8','row_ror:4','row_ror:2','row_ror:1']:
        a.nop(2)
        for r in regs: dpp(op,r,r,r,ctl)
    for sw in ['v_permlane16_swap_b32','v_permlane32_swap_b32']:
        for r,t in zip(regs,tmps): a(f'v_mov_b32 v{t}, v{r}')
        a.nop(2)
        for r,t in zip(regs,tmps): a(f'{sw} v{r}, v{t}')
        a.nop(2)
        for r,t in zip(regs,tmps): a(f'{op} v{r}, v{r}, v{t}')

def bf16r(d,s_):
    a(f'v_cvt_pk_bf16_f32 v{d}, v{s_}, v{s_}\nv_lshlrev_b32 v{d}, 16, v{d}')
def bf16r2(d0,d1,s0,s1,t):
    a(f'v_cvt_pk_bf16_f32 v{t}, v{s0}, v{s1}\nv_lshlrev_b32 v{d0}, 16, v{t}\nv_and_b32 v{d1}, 0xffff0000, v{t}')

def halve8(acc):
    a.nop(2)
    for i in range(4): a(f'v_permlane32_swap_b32 v{acc[i]}, v{acc[i+4]}')
    a.nop(2)
    for i in range(4): a(f'v_add_f32 v{acc[i]}, v{acc[i]}, v{acc[i+4]}')
    a.nop(2)
    for i in range(2): a(f'v_permlane16_swap_b32 v{acc[i]}, v{acc[i+2]}')
    a.nop(2)
    for i in range(2): a(f'v_add_f32 v{acc[i]}, v{acc[i]}, v{acc[i+2]}')
    return acc[0],acc[1]

def fma8(acc, w, sc, t0, t1):
    for k in range(4):
        a(f'v_lshlrev_b32 v{t0}, 16, v{w+k}\nv_and_b32 v{t1}, 0xffff0000, v{w+k}')
        a(f'v_fmac_f32 v{acc[2*k]}, v{sc}, v{t0}\nv_fmac_f32 v{acc[2*k+1]}, v{sc}, v{t1}')

def kstart(name):
    a.L.append(f'.globl {name}\n.p2align 8\n.type {name},@function\n{name}:')

KD=[]
def kend(name,vgpr,sgpr=102):
    acc=(vgpr+3)//4*4
    KD.append(f'''.amdhsa_kernel {name}
  .amdhsa_next_free_vgpr {vgpr}
  .amdhsa_next_free_sgpr {sgpr}
  .amdhsa_accum_offset {acc}
  .amdhsa_group_segment_fixed_size 0
  .amdhsa_kernarg_size 128
  .amdhsa_user_sgpr_count 2
  .amdhsa_user_sgpr_kernarg_segment_ptr 1
  .amdhsa_system_sgpr_workgroup_id_x 1
.end_amdhsa_kernel''')

LAUNCH=[]
LOG2E='0x3fb8aa3b'

def k1():
    n='k1_kernel'; NZ=(ZEND-QABS)//4096
    LAUNCH.append((n,192+NZ,256,1024))
    kstart(n)
    a(f'''s_cmp_ge_u32 s2, {192+NZ}
    s_cbranch_scc1 K1_END
    s_load_dwordx2 s[4:5], s[0:1], 120
    s_load_dwordx4 s[8:11], s[0:1], 88
    s_cmp_ge_u32 s2, 192
    s_cbranch_scc1 K1_ZERO
    s_lshr_b32 s6, s2, 2
    s_and_b32 s7, s2, 3
    v_and_b32 v1, 7, v0
    v_lshrrev_b32 v2, 3, v0
    s_lshl_b32 s3, s7, 7
    v_add_u32 v3, s3, v2
    v_mul_u32_u24 v4, 0x1800, v3
    s_lshl_b32 s3, s6, 7
    v_lshl_add_u32 v4, v1, 4, v4
    v_add_u32 v4, s3, v4
    v_lshlrev_b32 v5, 1, v3
    s_mov_b32 s24, 196608
    s_mov_b32 s25, 393216
    s_mov_b32 s26, 589824
    s_waitcnt lgkmcnt(0)''')
    srd(12,10,11,3145728); srd(16,8,9,1024); srd(20,4,5,WSBYTES)
    for i in range(4): a(f'buffer_load_ushort v{24+i}, v5, s[16:19], 0 offen offset:{64*i}')
    for i in range(4): a(f'buffer_load_dwordx4 v[{8+4*i}:{11+4*i}], v4, s[12:15], {"0" if i==0 else "s%d"%(23+i)} offen')
    acc=list(range(32,40))
    for r in acc: a(f'v_mov_b32 v{r}, 0')
    a('s_waitcnt vmcnt(4)')
    for i in range(4):
        a(f'''v_lshlrev_b32 v{24+i}, 16, v{24+i}
        v_mul_f32 v{28+i}, 0xbfb8aa3b, v{24+i}
        v_exp_f32 v{28+i}, v{28+i}
        s_nop 0
        v_add_f32 v{28+i}, 1.0, v{28+i}
        v_rcp_f32 v{28+i}, v{28+i}
        s_nop 0
        v_mul_f32 v{24+i}, v{24+i}, v{28+i}''')
        bf16r(24+i,24+i)
    for i in range(4):
        a(f's_waitcnt vmcnt({3-i})')
        fma8(acc,8+4*i,24+i,40,41)
    c0,c1=halve8(acc)
    a.nop(2)
    dpp('v_add_f32',c0,c0,c0,'row_ror:8'); dpp('v_add_f32',c1,c1,c1,'row_ror:8')
    a(f'''v_lshrrev_b32 v1, 6, v0
    v_lshlrev_b32 v1, 8, v1
    v_and_b32 v2, 7, v0
    v_lshl_add_u32 v1, v2, 5, v1
    v_bfe_u32 v2, v0, 4, 1
    v_lshl_add_u32 v1, v2, 3, v1
    v_bfe_u32 v2, v0, 5, 1
    v_lshl_add_u32 v1, v2, 4, v1
    ds_write_b64 v1, v[{c0}:{c1}]
    s_waitcnt lgkmcnt(0)
    s_barrier
    v_cmp_gt_u32 vcc, 64, v0
    s_and_saveexec_b64 s[28:29], vcc
    s_cbranch_execz K1_END
    v_lshlrev_b32 v1, 2, v0
    ds_read2_b32 v[2:3], v1 offset0:0 offset1:64
    ds_read2_b32 v[4:5], v1 offset0:128 offset1:192
    s_mul_i32 s3, s7, 12288
    s_lshl_b32 s6, s6, 8
    s_add_u32 s3, s3, s6
    s_waitcnt lgkmcnt(0)
    v_add_f32 v2, v2, v3
    v_add_f32 v4, v4, v5
    v_add_f32 v2, v2, v4
    buffer_store_dword v2, v1, s[20:23], s3 offen offset:{MODP}
    s_endpgm''')
    a.label('K1_ZERO')
    a(f'''s_sub_u32 s3, s2, 192
    s_lshl_b32 s3, s3, 12
    s_add_u32 s3, s3, {QABS}
    v_lshlrev_b32 v1, 4, v0
    v_mov_b32 v4, 0
    v_mov_b32 v5, 0
    v_mov_b32 v6, 0
    v_mov_b32 v7, 0
    s_waitcnt lgkmcnt(0)''')
    srd(20,4,5,WSBYTES)
    a('buffer_store_dwordx4 v[4:7], v1, s[20:23], s3 offen')
    a.label('K1_END'); a('s_endpgm')
    kend(n,48)

def ln_stats(x8, vm, vs, t0, t1):
    a(f'v_add_f32 v{vm}, v{x8[0]}, v{x8[1]}')
    for k in range(2,8): a(f'v_add_f32 v{vm}, v{vm}, v{x8[k]}')
    wave_allreduce('v_add_f32',[vm],[t0])
    a(f'v_mul_f32 v{vm}, 0x3b000000, v{vm}')
    a(f'v_mov_b32 v{vs}, 0')
    for k in range(8):
        a(f'v_sub_f32 v{t0}, v{x8[k]}, v{vm}\nv_fmac_f32 v{vs}, v{t0}, v{t0}')
    wave_allreduce('v_add_f32',[vs],[t0])
    a(f'v_mul_f32 v{vs}, 0x3b000000, v{vs}')
    bf16r2(vm,vs,vm,vs,t0)
    a(f'v_add_f32 v{vs}, 0x3727c5ac, v{vs}')
    bf16r(vs,vs)
    a(f'v_sqrt_f32 v{vs}, v{vs}\ns_nop 0')
    bf16r(vs,vs)

def div2(d0,d1,n0,n1,den,t0,t1,t2):
    a(f'''v_rcp_f32 v{t0}, v{den}
    s_nop 0
    v_mul_f32 v{t1}, v{n0}, v{t0}
    v_mul_f32 v{t2}, v{n1}, v{t0}
    v_fma_f32 v{d0}, -v{t1}, v{den}, v{n0}
    v_fma_f32 v{d1}, -v{t2}, v{den}, v{n1}
    v_fma_f32 v{d0}, v{d0}, v{t0}, v{t1}
    v_fma_f32 v{d1}, v{d1}, v{t0}, v{t2}''')

def unpack8(dst, src):
    for k in range(4):
        a(f'v_and_b32 v{dst[2*k+1]}, 0xffff0000, v{src+k}\nv_lshlrev_b32 v{dst[2*k]}, 16, v{src+k}')

def k2():
    n='k2_kernel'
    LAUNCH.append((n,256,256,2048+256))
    kstart(n)
    a(f'''s_cmp_ge_u32 s2, 256
    s_cbranch_scc1 K2_END
    s_load_dwordx2 s[4:5], s[0:1], 120
    s_load_dwordx2 s[6:7], s[0:1], 0
    s_load_dwordx4 s[8:11], s[0:1], 16
    s_and_b32 s30, s2, 7
    s_lshr_b32 s3, s2, 6
    s_lshl_b32 s3, s3, 3
    s_or_b32 s30, s30, s3
    s_bfe_u32 s31, s2, 0x30003
    s_lshl_b32 s3, s30, 8
    s_lshl_b32 s28, s31, 5
    s_add_u32 s3, s3, s28
    v_lshrrev_b32 v2, 1, v0
    v_and_b32 v1, 1, v0
    v_lshlrev_b32 v4, 13, v2
    v_lshl_add_u32 v4, v1, 4, v4
    v_add_u32 v4, s3, v4
    s_mov_b32 s24, 0x100000
    s_mov_b32 s25, 0x200000
    s_mov_b32 s26, 0x300000
    v_and_b32 v5, 63, v0
    v_lshlrev_b32 v5, 4, v5
    v_lshlrev_b32 v6, 2, v0
    v_lshlrev_b32 v7, 3, v0
    s_waitcnt lgkmcnt(0)''')
    srd(12,8,9,4194304); srd(16,10,11,4194304); srd(20,4,5,WSBYTES); srd(32,6,7,1024)
    a('buffer_load_dwordx4 v[40:43], v5, s[32:35], 0 offen')
    a('buffer_load_dword v44, v6, s[32:35], 0 offen')
    for p in range(4):
        a(f's_mov_b32 s3, {MODP+p*12288}')
        a(f'buffer_load_dwordx2 v[{48+4*p}:{49+4*p}], v7, s[20:23], s3 offen')
        a(f'buffer_load_dwordx2 v[{50+4*p}:{51+4*p}], v7, s[20:23], s3 offen offset:2048')
    for i in range(4): a(f'buffer_load_dwordx4 v[{8+4*i}:{11+4*i}], v4, s[12:15], {"0" if i==0 else "s%d"%(23+i)} offen')
    for i in range(4): a(f'buffer_load_dwordx4 v[{24+4*i}:{27+4*i}], v4, s[16:19], {"0" if i==0 else "s%d"%(23+i)} offen')
    a('s_waitcnt vmcnt(17)')
    x8=list(range(64,72)); unpack8(x8,40)
    ln_stats(x8,72,73,74,75)
    a('s_waitcnt vmcnt(8)')
    a('''v_lshlrev_b32 v64, 16, v44
    v_and_b32 v65, 0xffff0000, v44
    v_sub_f32 v64, v64, v72
    v_sub_f32 v65, v65, v72''')
    bf16r2(64,65,64,65,74)
    div2(66,67,64,65,73,74,75,76)
    bf16r2(66,67,66,67,74)
    for k in range(4):
        a(f'v_add_f32 v{48+k}, v{48+k}, v{52+k}\nv_add_f32 v{56+k}, v{56+k}, v{60+k}\nv_add_f32 v{48+k}, v{48+k}, v{56+k}')
    bf16r2(48,49,48,49,74); bf16r2(50,51,50,51,74)
    a('v_add_f32 v50, 1.0, v50\nv_add_f32 v51, 1.0, v51')
    bf16r2(50,51,50,51,74)
    a('v_mul_f32 v66, v66, v50\nv_mul_f32 v67, v67, v51')
    bf16r2(66,67,66,67,74)
    a('v_add_f32 v66, v66, v48\nv_add_f32 v67, v67, v49')
    bf16r2(66,67,66,67,74)
    a('''ds_write_b64 v7, v[66:67]
    s_waitcnt lgkmcnt(0)
    s_barrier
    v_lshlrev_b32 v3, 2, v2
    ds_read2_b32 v[64:65], v3 offset0:0 offset1:128
    v_add_u32 v3, 1024, v3
    ds_read2_b32 v[66:67], v3 offset0:0 offset1:128''')
    acc=list(range(48,56))
    for r in acc: a(f'v_mov_b32 v{r}, 0')
    a('s_waitcnt lgkmcnt(0)')
    for i in range(4):
        a(f's_waitcnt vmcnt({7-i})')
        fma8(acc,8+4*i,64+i,74,75)
    c0,c1=halve8(acc)
    for ctl in ['row_ror:8','row_ror:4','row_ror:2']:
        a.nop(2)
        dpp('v_add_f32',c0,c0,c0,ctl); dpp('v_add_f32',c1,c1,c1,ctl)
    a(f'''v_lshrrev_b32 v3, 6, v0
    v_lshlrev_b32 v3, 6, v3
    v_lshl_add_u32 v3, v1, 5, v3
    v_bfe_u32 v5, v0, 4, 1
    v_lshl_add_u32 v3, v5, 3, v3
    v_bfe_u32 v5, v0, 5, 1
    v_lshl_add_u32 v3, v5, 4, v3
    ds_write_b64 v3, v[{c0}:{c1}] offset:2048
    s_waitcnt lgkmcnt(0)
    s_barrier
    v_lshlrev_b32 v3, 5, v1''')
    for w in range(4):
        a(f'ds_read_b128 v[{64+8*w}:{67+8*w}], v3 offset:{2048+64*w}\nds_read_b128 v[{68+8*w}:{71+8*w}], v3 offset:{2048+64*w+16}')
    a('s_waitcnt lgkmcnt(0)')
    for k in range(8):
        a(f'v_add_f32 v{64+k}, v{64+k}, v{72+k}\nv_add_f32 v{80+k}, v{80+k}, v{88+k}\nv_add_f32 v{64+k}, v{64+k}, v{80+k}')
    for k in range(0,8,2): bf16r2(64+k,65+k,64+k,65+k,74+16)
    a('s_waitcnt vmcnt(0)')
    for i in range(4):
        w=24+4*i; d=48+i
        for k in range(4):
            a(f'v_lshlrev_b32 v90, 16, v{w+k}\nv_and_b32 v91, 0xffff0000, v{w+k}')
            if k==0: a(f'v_mul_f32 v{d}, v{64}, v90')
            else: a(f'v_fmac_f32 v{d}, v{64+2*k}, v90')
            a(f'v_fmac_f32 v{d}, v{65+2*k}, v91')
    a.nop(2)
    for i in range(4): dpp('v_add_f32',48+i,48+i,48+i,'quad_perm:[1,0,3,2]')
    a(f'''v_cmp_eq_u32 vcc, 1, v1
    s_nop 1
    v_cndmask_b32 v48, v48, v50, vcc
    v_cndmask_b32 v49, v49, v51, vcc
    v_lshlrev_b32 v3, 2, v2
    v_lshl_add_u32 v3, v1, 10, v3
    s_lshl_b32 s3, s30, 11
    s_add_u32 s3, s3, {QABS}
    buffer_atomic_add_f32 v48, v3, s[20:23], s3 offen
    buffer_atomic_add_f32 v49, v3, s[20:23], s3 offen offset:512''')
    a.label('K2_END'); a('s_endpgm')
    kend(n,96)

def k3():
    n='k3_kernel'
    NT=NK//16
    REG=NK*256
    SC=4*REG
    LDS=SC+4*NT*1024
    LAUNCH.append((n,256,256,LDS))
    kstart(n)
    NG=32//NH
    lg=NG.bit_length()-1
    a(f'''s_cmp_ge_u32 s2, 256
    s_cbranch_scc1 K3_END
    s_load_dwordx2 s[4:5], s[0:1], 120
    s_load_dwordx2 s[6:7], s[0:1], 8
    s_and_b32 s30, s2, 7
    s_lshr_b32 s3, s2, {3+lg}
    s_lshl_b32 s3, s3, 3
    s_or_b32 s30, s30, s3
    s_lshr_b32 s31, s2, 3
    s_and_b32 s31, s31, {NG-1}
    v_lshrrev_b32 v1, 6, v0
    s_nop 0
    v_readfirstlane_b32 s29, v1
    v_and_b32 v1, 63, v0
    v_lshrrev_b32 v2, 4, v1
    v_and_b32 v3, 15, v1''')
    a(f'''v_lshlrev_b32 v4, 1, v2
    v_xor_b32 v4, v4, v3
    v_lshlrev_b32 v4, 4, v4
    v_lshl_add_u32 v4, v2, 10, v4
    v_xor_b32 v5, 0x80, v4
    s_lshl_b32 s3, s29, 8
    s_mul_i32 s28, s30, {NK*1024}
    s_add_u32 s28, s28, s3
    s_mul_i32 s27, s29, {REG}
    s_waitcnt lgkmcnt(0)''')
    srd(12,6,7,4194304); srd(20,4,5,WSBYTES)
    a(f'''v_min_u32 v6, {NH-1}, v3
    v_lshlrev_b32 v6, 11, v6
    v_lshl_add_u32 v6, v2, 5, v6
    s_lshl_b32 s3, s31, {11+(NH.bit_length()-1)}
    s_lshl_b32 s26, s29, 9
    s_add_u32 s3, s3, s26
    s_add_u32 s3, s3, {QABS}''')
    for s_ in range(4):
        a(f'buffer_load_dwordx4 v[{16+8*s_}:{19+8*s_}], v6, s[20:23], s3 offen offset:{128*s_}')
        a(f'buffer_load_dwordx4 v[{20+8*s_}:{23+8*s_}], v6, s[20:23], s3 offen offset:{128*s_+16}')
    for i in range(NK//4):
        a(f's_add_u32 m0, s27, {1024*i}')
        a(f's_add_u32 s3, s28, {4096*i}')
        a(f'buffer_load_dwordx4 v{4+(i&1)}, s[12:15], s3 offen lds')
    a(f's_waitcnt vmcnt({NK//4})')
    for s_ in range(4):
        for k in range(4):
            x0=16+8*s_+2*k; x1=x0+1; hi=48+4*s_+k; lo=64+4*s_+k
            a(f'''v_cvt_pk_bf16_f32 v{hi}, v{x0}, v{x1}
            v_lshlrev_b32 v8, 16, v{hi}
            v_and_b32 v9, 0xffff0000, v{hi}
            v_sub_f32 v{x0}, v{x0}, v8
            v_sub_f32 v{x1}, v{x1}, v9
            v_cvt_pk_bf16_f32 v{lo}, v{x0}, v{x1}''')
    a(f'''v_and_b32 v7, 7, v3
    v_lshlrev_b32 v7, 1, v7
    v_xor_b32 v7, v7, v2
    v_lshlrev_b32 v7, 4, v7
    v_lshl_add_u32 v7, v3, 8, v7
    v_add_u32 v7, s27, v7''')
    for s_ in range(1,4): a(f'v_xor_b32 v{7+s_}, {s_<<6}, v7')
    D1=80
    for r in range(NT*4): a(f'v_mov_b32 v{D1+r}, 0')
    AF=16
    for T in range(NT):
        a(f's_waitcnt vmcnt({NK//4-4*(T+1)})')
        base=AF+16*(T&1)
        for s_ in range(4): a(f'ds_read_b128 v[{base+4*s_}:{base+4*s_+3}], v{7+s_} offset:{4096*T}')
        for s_ in range(4):
            a(f's_waitcnt lgkmcnt({3-s_})')
            a(f'v_mfma_f32_16x16x32_bf16 v[{D1+4*T}:{D1+4*T+3}], v[{base+4*s_}:{base+4*s_+3}], v[{48+4*s_}:{51+4*s_}], v[{D1+4*T}:{D1+4*T+3}]')
            a(f'v_mfma_f32_16x16x32_bf16 v[{D1+4*T}:{D1+4*T+3}], v[{base+4*s_}:{base+4*s_+3}], v[{64+4*s_}:{67+4*s_}], v[{D1+4*T}:{D1+4*T+3}]')
    a(f'''v_lshlrev_b32 v11, 4, v1
    v_add_u32 v11, {SC}, v11
    s_mul_i32 s3, s29, {NT*1024}
    v_add_u32 v12, s3, v11''')
    a.nop(8)
    for T in range(NT): a(f'ds_write_b128 v12, v[{D1+4*T}:{D1+4*T+3}] offset:{1024*T}')
    a('s_waitcnt lgkmcnt(0)\ns_barrier')
    P0=16
    assert NT==4
    for w in range(4):
        for T in range(NT): a(f'ds_read_b128 v[{P0+16*w+4*T}:{P0+16*w+4*T+3}], v11 offset:{(w*NT+T)*1024}')
    a('s_waitcnt lgkmcnt(0)')
    for r in range(16):
        a(f'v_add_f32 v{P0+r}, v{P0+r}, v{P0+16+r}\nv_add_f32 v{P0+32+r}, v{P0+32+r}, v{P0+48+r}\nv_add_f32 v{P0+r}, v{P0+r}, v{P0+32+r}')
    for r in range(0,16,2):
        bf16r2(P0+r,P0+r+1,P0+r,P0+r+1,8)
        a(f'v_mul_f32 v{P0+r}, 0x3db504f3, v{P0+r}\nv_mul_f32 v{P0+r+1}, 0x3db504f3, v{P0+r+1}')
        bf16r2(P0+r,P0+r+1,P0+r,P0+r+1,8)
    a(f'v_max_f32 v32, v{P0}, v{P0+1}')
    for r in range(2,16,2): a(f'v_max3_f32 v32, v32, v{P0+r}, v{P0+r+1}')
    for sw in ['v_permlane16_swap_b32','v_permlane32_swap_b32']:
        a(f'v_mov_b32 v33, v32\ns_nop 1\n{sw} v32, v33\ns_nop 1\nv_max_f32 v32, v32, v33')
    a('v_mov_b32 v34, 0')
    a(f's_mov_b32 s3, {LOG2E}')
    for r in range(16):
        a(f'v_sub_f32 v{P0+r}, v{P0+r}, v32\nv_mul_f32 v{P0+r}, s3, v{P0+r}\nv_exp_f32 v{P0+r}, v{P0+r}')
    a('s_nop 0')
    for r in range(16): a(f'v_add_f32 v34, v34, v{P0+r}')
    for sw in ['v_permlane16_swap_b32','v_permlane32_swap_b32']:
        a(f'v_mov_b32 v33, v34\ns_nop 1\n{sw} v34, v33\ns_nop 1\nv_add_f32 v34, v34, v33')
    for kk in range(NT//2):
        for hh in range(2):
            T=2*kk+hh
            a(f'v_cvt_pk_bf16_f32 v{40+4*kk+2*hh}, v{P0+4*T}, v{P0+4*T+1}\nv_cvt_pk_bf16_f32 v{41+4*kk+2*hh}, v{P0+4*T+2}, v{P0+4*T+3}')
    a(f'''v_lshrrev_b32 v7, 2, v3
    v_lshl_add_u32 v7, v2, 2, v7
    v_and_b32 v8, 7, v7
    v_lshlrev_b32 v8, 5, v8
    v_lshl_add_u32 v8, v7, 8, v8
    v_and_b32 v9, 3, v1
    v_lshl_add_u32 v8, v9, 3, v8
    v_add_u32 v8, s27, v8''')
    a(f'''v_mov_b32 v35, v34
    v_mov_b32 v34, v32
    s_mul_i32 s3, s31, {NH*S*8}
    s_lshl_b32 s26, s30, 3
    s_add_u32 s3, s3, s26
    s_add_u32 s3, s3, {STAT}
    v_mul_u32_u24 v9, {S*8}, v3
    v_cmp_gt_u32 vcc, {NH}, v0
    s_and_saveexec_b64 s[24:25], vcc
    buffer_store_dwordx2 v[34:35], v9, s[20:23], s3 offen
    s_mov_b64 exec, s[24:25]''')
    D2=80
    for r in range(32): a(f'v_mov_b32 v{D2+r}, 0')
    FR=48
    a(f'''v_mul_u32_u24 v10, {S*2048}, v3
    v_lshl_add_u32 v10, v2, 4, v10
    s_mul_i32 s3, s31, {NH*S*2048}
    s_lshl_b32 s26, s30, 11
    s_add_u32 s3, s3, s26
    s_lshl_b32 s26, s29, 9
    s_add_u32 s3, s3, s26
    s_add_u32 s3, s3, {PART}''')
    for t in range(8):
        a(f'v_xor_b32 v9, {t<<5}, v8')
        for kk in range(NT//2):
            f=FR+4*((t*(NT//2)+kk)%8)
            a(f'ds_read_b64_tr_b16 v[{f}:{f+1}], v9 offset:{4096*(2*kk)}\nds_read_b64_tr_b16 v[{f+2}:{f+3}], v9 offset:{4096*(2*kk+1)}')
        for kk in range(NT//2):
            f=FR+4*((t*(NT//2)+kk)%8)
            a(f's_waitcnt lgkmcnt({2*(NT//2-1-kk)})')
            a(f'v_mfma_f32_16x16x32_bf16 v[{D2+4*t}:{D2+4*t+3}], v[{f}:{f+3}], v[{40+4*kk}:{43+4*kk}], v[{D2+4*t}:{D2+4*t+3}]')
    a.nop(8)
    a(f'''v_cmp_gt_u32 vcc, {NH}, v3
    s_and_saveexec_b64 s[24:25], vcc''')
    for t in range(8): a(f'buffer_store_dwordx4 v[{D2+4*t}:{D2+4*t+3}], v10, s[20:23], s3 offen offset:{64*t}')
    a.label('K3_END'); a('s_endpgm')
    kend(n,112)

def k4():
    n='k4_kernel'
    LAUNCH.append((n,256,256,2048+256))
    kstart(n)
    a(f'''s_cmp_ge_u32 s2, 256
    s_cbranch_scc1 K4_END
    s_load_dwordx2 s[4:5], s[0:1], 120
    s_load_dwordx4 s[8:11], s[0:1], 32
    s_and_b32 s30, s2, 7
    s_lshr_b32 s3, s2, 6
    s_lshl_b32 s3, s3, 3
    s_or_b32 s30, s30, s3
    s_bfe_u32 s31, s2, 0x30003
    s_lshl_b32 s3, s30, 8
    s_lshl_b32 s28, s31, 5
    s_add_u32 s3, s3, s28
    v_lshrrev_b32 v2, 1, v0
    v_and_b32 v1, 1, v0
    v_lshlrev_b32 v4, 13, v2
    v_lshl_add_u32 v4, v1, 4, v4
    v_add_u32 v4, s3, v4
    s_mov_b32 s24, 0x100000
    s_mov_b32 s25, 0x200000
    s_mov_b32 s26, 0x300000
    v_and_b32 v5, 63, v0
    v_min_u32 v5, {S-1}, v5
    v_lshlrev_b32 v5, 3, v5
    v_lshlrev_b32 v6, 2, v0
    v_lshlrev_b32 v7, 3, v0
    s_waitcnt lgkmcnt(0)''')
    srd(12,8,9,4194304); srd(16,10,11,4194304); srd(20,4,5,WSBYTES)
    a(f'''s_mul_i32 s3, s30, {S*8}
    s_add_u32 s3, s3, {STAT}
    buffer_load_dwordx2 v[40:41], v5, s[20:23], s3 offen
    s_mul_i32 s27, s30, {S*2048}
    s_add_u32 s27, s27, {PART}''')
    PB=64
    for s_ in range(S):
        if s_%2==0 and s_>0: a('s_add_u32 s27, s27, 4096')
        a(f'buffer_load_dwordx2 v[{PB+2*s_}:{PB+2*s_+1}], v7, s[20:23], s27 offen offset:{2048*(s_%2)}')
    for i in range(4): a(f'buffer_load_dwordx4 v[{8+4*i}:{11+4*i}], v4, s[12:15], {"0" if i==0 else "s%d"%(23+i)} offen')
    a(f'''s_lshl_b32 s3, s30, 17
    s_lshl_b32 s28, s31, 14
    s_add_u32 s3, s3, s28''')
    for d in range(16):
        if d%4==0 and d>0: a('s_add_u32 s3, s3, 4096')
        a(f'buffer_load_dword v{24+d}, v6, s[16:19], s3 offen offset:{1024*(d%4)}')
    a(f's_waitcnt vmcnt({min(63,S+20)})')
    a('v_mov_b32 v42, v40')
    wave_allreduce('v_max_f32',[42],[43])
    a(f'''v_sub_f32 v40, v40, v42
    v_mul_f32 v40, {LOG2E}, v40
    v_exp_f32 v40, v40
    s_nop 0
    v_mul_f32 v41, v41, v40''')
    if S<64:
        a(f'''v_and_b32 v43, 63, v0
        v_cmp_gt_u32 vcc, {S}, v43
        s_nop 1
        v_cndmask_b32 v41, 0, v41, vcc''')
    wave_allreduce('v_add_f32',[41],[43])
    a('''v_rcp_f32 v41, v41
    s_nop 0
    v_mul_f32 v40, v40, v41
    v_mov_b32 v42, 0
    v_mov_b32 v43, 0
    s_nop 0''')
    for s_ in range(S):
        a(f'v_readlane_b32 s{36+(s_%16)}, v40, {s_}')
        if s_%16==15:
            a(f's_waitcnt vmcnt({min(63,S+20-1-s_)})')
            for k in range(16):
                q=s_-15+k
                a(f'v_fmac_f32 v42, s{36+k}, v{PB+2*q}\nv_fmac_f32 v43, s{36+k}, v{PB+2*q+1}')
    a('''ds_write_b64 v7, v[42:43]
    s_waitcnt lgkmcnt(0)
    s_barrier
    v_lshlrev_b32 v3, 2, v2
    ds_read2_b32 v[64:65], v3 offset0:0 offset1:128
    v_add_u32 v3, 1024, v3
    ds_read2_b32 v[66:67], v3 offset0:0 offset1:128''')
    acc=list(range(48,56))
    for r in acc: a(f'v_mov_b32 v{r}, 0')
    a('s_waitcnt lgkmcnt(0)')
    for i in range(4):
        a(f's_waitcnt vmcnt({19-i})')
        fma8(acc,8+4*i,64+i,74,75)
    c0,c1=halve8(acc)
    for ctl in ['row_ror:8','row_ror:4','row_ror:2']:
        a.nop(2)
        dpp('v_add_f32',c0,c0,c0,ctl); dpp('v_add_f32',c1,c1,c1,ctl)
    a(f'''v_lshrrev_b32 v3, 6, v0
    v_lshlrev_b32 v3, 6, v3
    v_lshl_add_u32 v3, v1, 5, v3
    v_bfe_u32 v5, v0, 4, 1
    v_lshl_add_u32 v3, v5, 3, v3
    v_bfe_u32 v5, v0, 5, 1
    v_lshl_add_u32 v3, v5, 4, v3
    ds_write_b64 v3, v[{c0}:{c1}] offset:2048
    s_waitcnt lgkmcnt(0)
    s_barrier
    v_mov_b32 v3, 0''')
    for w in range(4):
        for q in range(4): a(f'ds_read_b128 v[{64+16*w+4*q}:{67+16*w+4*q}], v3 offset:{2048+64*w+16*q}')
    a('s_waitcnt lgkmcnt(0)')
    for k in range(16):
        a(f'v_add_f32 v{64+k}, v{64+k}, v{80+k}\nv_add_f32 v{96+k}, v{96+k}, v{112+k}\nv_add_f32 v{64+k}, v{64+k}, v{96+k}')
    for k in range(0,16,2): bf16r2(64+k,65+k,64+k,65+k,90)
    a('v_mov_b32 v42, 0\nv_mov_b32 v43, 0\ns_waitcnt vmcnt(0)')
    for d in range(16):
        a(f'v_lshlrev_b32 v90, 16, v{24+d}\nv_and_b32 v91, 0xffff0000, v{24+d}\nv_fmac_f32 v42, v{64+d}, v90\nv_fmac_f32 v43, v{64+d}, v91')
    a(f'''s_and_b32 s3, s2, 7
    s_lshl_b32 s3, s3, 11
    s_add_u32 s3, s3, {OUTACC}
    buffer_atomic_add_f32 v42, v7, s[20:23], s3 offen
    buffer_atomic_add_f32 v43, v7, s[20:23], s3 offen offset:4''')
    a.label('K4_END'); a('s_endpgm')
    kend(n,64+2*S)

def k5():
    n='k5_kernel'
    NW=86
    LAUNCH.append((n,NW,256,2048+256+64))
    kstart(n)
    a(f'''s_cmp_ge_u32 s2, {NW}
    s_cbranch_scc1 K5_END
    s_load_dwordx2 s[4:5], s[0:1], 120
    s_load_dwordx2 s[6:7], s[0:1], 0
    s_load_dwordx4 s[8:11], s[0:1], 56
    s_load_dwordx2 s[36:37], s[0:1], 72
    v_lshrrev_b32 v2, 1, v0
    v_and_b32 v1, 1, v0
    v_mul_u32_u24 v4, 2752, v2
    v_lshl_add_u32 v4, v1, 4, v4
    s_lshl_b32 s3, s2, 5
    v_add_u32 v4, s3, v4
    s_mov_b32 s24, {2752*128}
    s_mov_b32 s25, {2752*256}
    s_mov_b32 s26, {2752*384}
    v_lshlrev_b32 v6, 2, v0
    v_lshlrev_b32 v7, 3, v0
    s_waitcnt lgkmcnt(0)''')
    srd(12,8,9,512*2752); srd(16,36,37,1376*1024); srd(20,4,5,WSBYTES); srd(32,6,7,1024); srd(40,10,11,2752)
    a('buffer_load_dword v44, v6, s[32:35], 0 offen')
    a(f's_mov_b32 s3, {OUTACC}')
    for r in range(8):
        if r==2 or r==4 or r==6: a('s_add_u32 s3, s3, 4096')
        a(f'buffer_load_dwordx2 v[{64+2*r}:{65+2*r}], v7, s[20:23], s3 offen offset:{2048*(r%2)}')
    for p in range(4):
        a(f's_mov_b32 s3, {MODP+p*12288+4096}')
        a(f'buffer_load_dwordx2 v[{80+6*p}:{81+6*p}], v7, s[20:23], s3 offen')
        a(f'buffer_load_dwordx2 v[{82+6*p}:{83+6*p}], v7, s[20:23], s3 offen offset:2048')
        a(f's_add_u32 s3, s3, 4096')
        a(f'buffer_load_dwordx2 v[{84+6*p}:{85+6*p}], v7, s[20:23], s3 offen')
    for i in range(4): a(f'buffer_load_dwordx4 v[{8+4*i}:{11+4*i}], v4, s[12:15], {"0" if i==0 else "s%d"%(23+i)} offen')
    a('s_lshl_b32 s3, s2, 14')
    for d in range(16):
        if d%4==0 and d>0: a('s_add_u32 s3, s3, 4096')
        a(f'buffer_load_dword v{24+d}, v6, s[16:19], s3 offen offset:{1024*(d%4)}')
    a('''s_lshl_b32 s3, s2, 5
    v_mov_b32 v5, 0
    buffer_load_dwordx4 v[48:51], v5, s[40:43], s3 offen
    buffer_load_dwordx4 v[52:55], v5, s[40:43], s3 offen offset:16''')
    a('s_waitcnt vmcnt(22)')
    for k in range(2):
        a(f'''v_add_f32 v{64+k}, v{64+k}, v{66+k}
        v_add_f32 v{68+k}, v{68+k}, v{70+k}
        v_add_f32 v{72+k}, v{72+k}, v{74+k}
        v_add_f32 v{76+k}, v{76+k}, v{78+k}
        v_add_f32 v{64+k}, v{64+k}, v{68+k}
        v_add_f32 v{72+k}, v{72+k}, v{76+k}
        v_add_f32 v{64+k}, v{64+k}, v{72+k}''')
    bf16r2(64,65,64,65,60)
    for k in range(6):
        a(f'v_add_f32 v{80+k}, v{80+k}, v{86+k}\nv_add_f32 v{92+k}, v{92+k}, v{98+k}\nv_add_f32 v{80+k}, v{80+k}, v{92+k}')
    for k in range(0,6,2): bf16r2(80+k,81+k,80+k,81+k,60)
    a('v_mul_f32 v64, v64, v80\nv_mul_f32 v65, v65, v81')
    bf16r2(64,65,64,65,60)
    a('''v_lshlrev_b32 v66, 16, v44
    v_and_b32 v67, 0xffff0000, v44
    v_add_f32 v64, v64, v66
    v_add_f32 v65, v65, v67''')
    bf16r2(64,65,64,65,60)
    def ln_wg(v0_,v1_):
        a(f'''ds_write_b64 v7, v[{v0_}:{v1_}]
        s_waitcnt lgkmcnt(0)
        s_barrier
        v_and_b32 v5, 63, v0
        v_lshlrev_b32 v5, 5, v5
        ds_read_b128 v[68:71], v5
        ds_read_b128 v[72:75], v5 offset:16
        s_waitcnt lgkmcnt(0)
        s_barrier''')
        ln_stats(list(range(68,76)),76,77,78,79)
        a(f'v_sub_f32 v{v0_}, v{v0_}, v76\nv_sub_f32 v{v1_}, v{v1_}, v76')
        bf16r2(v0_,v1_,v0_,v1_,60)
        div2(68,69,v0_,v1_,77,60,61,62)
        bf16r2(v0_,v1_,68,69,60)
    ln_wg(64,65)
    a('v_add_f32 v84, 1.0, v84\nv_add_f32 v85, 1.0, v85')
    bf16r2(84,85,84,85,60)
    a('v_mul_f32 v64, v64, v84\nv_mul_f32 v65, v65, v85')
    bf16r2(64,65,64,65,60)
    a('v_add_f32 v64, v64, v82\nv_add_f32 v65, v65, v83')
    bf16r2(64,65,64,65,60)
    ln_wg(64,65)
    a('''ds_write_b64 v7, v[64:65]
    s_waitcnt lgkmcnt(0)
    s_barrier
    v_lshlrev_b32 v3, 2, v2
    ds_read2_b32 v[64:65], v3 offset0:0 offset1:128
    v_add_u32 v3, 1024, v3
    ds_read2_b32 v[66:67], v3 offset0:0 offset1:128''')
    acc=list(range(100,108))
    for r in acc: a(f'v_mov_b32 v{r}, 0')
    a('s_waitcnt lgkmcnt(0)')
    for i in range(4):
        a(f's_waitcnt vmcnt({21-i})')
        fma8(acc,8+4*i,64+i,74,75)
    c0,c1=halve8(acc)
    for ctl in ['row_ror:8','row_ror:4','row_ror:2']:
        a.nop(2)
        dpp('v_add_f32',c0,c0,c0,ctl); dpp('v_add_f32',c1,c1,c1,ctl)
    a(f'''v_lshrrev_b32 v3, 6, v0
    v_lshlrev_b32 v3, 6, v3
    v_lshl_add_u32 v3, v1, 5, v3
    v_bfe_u32 v5, v0, 4, 1
    v_lshl_add_u32 v3, v5, 3, v3
    v_bfe_u32 v5, v0, 5, 1
    v_lshl_add_u32 v3, v5, 4, v3
    ds_write_b64 v3, v[{c0}:{c1}] offset:2048
    s_waitcnt lgkmcnt(0)
    s_barrier
    v_mov_b32 v3, 0''')
    for w in range(4):
        for q in range(4): a(f'ds_read_b128 v[{64+16*w+4*q}:{67+16*w+4*q}], v3 offset:{2048+64*w+16*q}')
    a('s_waitcnt lgkmcnt(0)')
    for k in range(16):
        a(f'v_add_f32 v{64+k}, v{64+k}, v{80+k}\nv_add_f32 v{96+k}, v{96+k}, v{112+k}\nv_add_f32 v{64+k}, v{64+k}, v{96+k}')
    for k in range(0,16,2): bf16r2(64+k,65+k,64+k,65+k,90)
    a('s_waitcnt vmcnt(0)')
    for k in range(8):
        a(f'v_lshlrev_b32 v90, 16, v{48+k}\nv_and_b32 v91, 0xffff0000, v{48+k}\nv_add_f32 v{64+2*k}, v{64+2*k}, v90\nv_add_f32 v{65+2*k}, v{65+2*k}, v91')
    for k in range(0,16,2): bf16r2(64+k,65+k,64+k,65+k,90)
    for k in range(16):
        x=64+k
        a(f'''v_mul_f32 v90, v{x}, v{x}
        v_mov_b32 v91, 0x3d372713
        v_fma_f32 v90, v90, v91, 1.0
        v_mul_f32 v90, v90, v{x}
        v_mul_f32 v90, 0xc0135761, v90
        v_exp_f32 v90, v90
        s_nop 0
        v_add_f32 v90, 1.0, v90
        v_rcp_f32 v90, v90
        s_nop 0
        v_mul_f32 v{x}, v{x}, v90''')
    for k in range(0,16,2): bf16r2(64+k,65+k,64+k,65+k,90)
    a('v_mov_b32 v42, 0\nv_mov_b32 v43, 0')
    for d in range(16):
        a(f'v_lshlrev_b32 v90, 16, v{24+d}\nv_and_b32 v91, 0xffff0000, v{24+d}\nv_fmac_f32 v42, v{64+d}, v90\nv_fmac_f32 v43, v{64+d}, v91')
    a(f'''s_and_b32 s3, s2, 7
    s_lshl_b32 s3, s3, 11
    s_add_u32 s3, s3, {O2ACC}
    buffer_atomic_add_f32 v42, v7, s[20:23], s3 offen
    buffer_atomic_add_f32 v43, v7, s[20:23], s3 offen offset:4''')
    a.label('K5_END'); a('s_endpgm')
    kend(n,128)

def k6():
    n='k6_kernel'
    LAUNCH.append((n,1,256,0))
    kstart(n)
    a(f'''s_cmp_ge_u32 s2, 1
    s_cbranch_scc1 K6_END
    s_load_dwordx2 s[4:5], s[0:1], 120
    s_load_dwordx2 s[6:7], s[0:1], 0
    s_load_dwordx2 s[8:9], s[0:1], 80
    s_load_dwordx2 s[10:11], s[0:1], 104
    v_lshlrev_b32 v6, 2, v0
    v_lshlrev_b32 v7, 3, v0
    s_waitcnt lgkmcnt(0)''')
    srd(20,4,5,WSBYTES); srd(32,6,7,1024); srd(12,8,9,1024); srd(16,10,11,1024)
    a('buffer_load_dword v44, v6, s[32:35], 0 offen')
    a('buffer_load_dword v45, v6, s[12:15], 0 offen')
    a(f's_mov_b32 s3, {OUTACC}')
    for r in range(16):
        if r%2==0 and r>0: a('s_add_u32 s3, s3, 4096')
        a(f'buffer_load_dwordx2 v[{64+2*r}:{65+2*r}], v7, s[20:23], s3 offen offset:{2048*(r%2)}')
    for p in range(4):
        a(f's_mov_b32 s3, {MODP+p*12288+4096}')
        a(f'buffer_load_dwordx2 v[{8+4*p}:{9+4*p}], v7, s[20:23], s3 offen')
        a(f's_mov_b32 s3, {MODP+p*12288+10240}')
        a(f'buffer_load_dwordx2 v[{10+4*p}:{11+4*p}], v7, s[20:23], s3 offen')
    a('s_waitcnt vmcnt(0)')
    for b in (64,80):
        for k in range(2):
            a(f'''v_add_f32 v{b+k}, v{b+k}, v{b+2+k}
            v_add_f32 v{b+4+k}, v{b+4+k}, v{b+6+k}
            v_add_f32 v{b+8+k}, v{b+8+k}, v{b+10+k}
            v_add_f32 v{b+12+k}, v{b+12+k}, v{b+14+k}
            v_add_f32 v{b+k}, v{b+k}, v{b+4+k}
            v_add_f32 v{b+8+k}, v{b+8+k}, v{b+12+k}
            v_add_f32 v{b+k}, v{b+k}, v{b+8+k}''')
        bf16r2(b,b+1,b,b+1,60)
    for k in range(4):
        a(f'v_add_f32 v{8+k}, v{8+k}, v{12+k}\nv_add_f32 v{16+k}, v{16+k}, v{20+k}\nv_add_f32 v{8+k}, v{8+k}, v{16+k}')
    bf16r2(8,9,8,9,60); bf16r2(10,11,10,11,60)
    a('v_mul_f32 v64, v64, v8\nv_mul_f32 v65, v65, v9')
    bf16r2(64,65,64,65,60)
    a('''v_lshlrev_b32 v66, 16, v44
    v_and_b32 v67, 0xffff0000, v44
    v_add_f32 v64, v64, v66
    v_add_f32 v65, v65, v67''')
    bf16r2(64,65,64,65,60)
    a('''v_lshlrev_b32 v66, 16, v45
    v_and_b32 v67, 0xffff0000, v45
    v_add_f32 v80, v80, v66
    v_add_f32 v81, v81, v67''')
    bf16r2(80,81,80,81,60)
    a('v_mul_f32 v80, v80, v10\nv_mul_f32 v81, v81, v11')
    bf16r2(80,81,80,81,60)
    a('''v_add_f32 v64, v64, v80
    v_add_f32 v65, v65, v81
    v_cvt_pk_bf16_f32 v64, v64, v65
    buffer_store_dword v64, v6, s[16:19], 0 offen''')
    a.label('K6_END'); a('s_endpgm')
    kend(n,96)

k1(); k2(); k3(); k4(); k5(); k6()
out=[l for l in HDR if l.startswith(';') and '@launch' not in l and 'Override' not in l and 'grid=ceil' not in l]
for (n,g,b,l) in LAUNCH: out.append(f'; @launch kernel={n} grid=({g},1,1) block=({b},1,1) lds={l}')
out.append('.amdgcn_target "amdgcn-amd-amdhsa--gfx950"\n.text')
out+=a.L
out.append('.section .rodata,"a"')
for k in KD: out.append('.p2align 6\n'+k)
dst=sys.argv[1] if len(sys.argv)>1 else 'cdna_kernels/%s.s'%NAME
open(dst,'w').write('\n'.join(out)+'\n')
print('wrote',dst,len(a.L),'lines')
```

```python
import sys, os
NAME='adaLN_cond__compressed_kv_cla__mixer_channel_mlp__decode'
HDR=open('cdna_kernels/%s.s.ref'%NAME).read().split('\n')
KN=NAME+'_kernel'
TS=os.environ.get('TS','0')=='1'
NST=os.environ.get('NST','').split(',')
SLP=os.environ.get('SLP','1')
DSL=os.environ.get('DSL','2')
SC1='sc1'
DMA0=os.environ.get('DMA0','0')=='1'
UVC=os.environ.get('UVC','0')=='1'
MODP=0x0
QP=0x10000
QA=0x20000
STAT=0x30000
CP=0x40000
OP=0x60000
O2P=0x70000
PART=0x100000
TSOFF=0x500000
WSBYTES=0x600000
XCH=0; RB=16384; REG=64*128; MGL=RB+8*REG; LDS=MGL+8192
NG5=43; G0=213; H0=205
WQ=72; WUK=80; WUV=88; WO=96; TSV=104; VDMA=119; XE=120; B1=121; B2=122; VRED=123; MG=124; W1=128; W2=144
S_WS=4; S_DBG=8; S_X=12; S_A=16; S_B=20; S_C=96; P=40
LOG2E='0x3fb8aa3b'
WS=f's[{S_WS}:{S_WS+3}]'
SA=f's[{S_A}:{S_A+3}]'; SB=f's[{S_B}:{S_B+3}]'; SC=f's[{S_C}:{S_C+3}]'; SX=f's[{S_X}:{S_X+3}]'; SD=f's[{S_DBG}:{S_DBG+3}]'

class A:
    def __init__(s): s.L=[]
    def __call__(s,x):
        for l in x.strip('\n').split('\n'): s.L.append('    '+l.strip())
    def label(s,x): s.L.append(x+':')
    def nop(s,n):
        while n>0:
            k=min(n,16); s('s_nop %d'%(k-1)); n-=k
a=A()
def srd(d,lo,hi,nbytes):
    a(f's_mov_b32 s{d}, s{lo}\ns_mov_b32 s{d+1}, s{hi}\ns_mov_b32 s{d+2}, {nbytes}\ns_mov_b32 s{d+3}, 0x20000')
def srdp(d,i,n): srd(d,P+2*i,P+2*i+1,n)
def dpp(op,d,s0,s1,ctl): a(f'{op}_dpp v{d}, v{s0}, v{s1} {ctl} row_mask:0xf bank_mask:0xf')
def wave_allreduce(op, regs, tmps):
    for ctl in ['row_ror:8','row_ror:4','row_ror:2','row_ror:1']:
        a.nop(2 if len(regs)<3 else 1)
        for r in regs: dpp(op,r,r,r,ctl)
    for sw in ['v_permlane16_swap_b32','v_permlane32_swap_b32']:
        for r,t in zip(regs,tmps): a(f'v_mov_b32 v{t}, v{r}')
        a.nop(2)
        for r,t in zip(regs,tmps): a(f'{sw} v{r}, v{t}')
        a.nop(1)
        for r,t in zip(regs,tmps): a(f'{op} v{r}, v{r}, v{t}')
def bf16r(d,s_): a(f'v_cvt_pk_bf16_f32 v{d}, v{s_}, v{s_}\nv_lshlrev_b32 v{d}, 16, v{d}')
def bf16r2(d0,d1,s0,s1,t): a(f'v_cvt_pk_bf16_f32 v{t}, v{s0}, v{s1}\nv_lshlrev_b32 v{d0}, 16, v{t}\nv_and_b32 v{d1}, 0xffff0000, v{t}')
def halve8(acc):
    a.nop(2)
    for i in range(4): a(f'v_permlane32_swap_b32 v{acc[i]}, v{acc[i+4]}')
    a.nop(1)
    for i in range(4): a(f'v_add_f32 v{acc[i]}, v{acc[i]}, v{acc[i+4]}')
    a.nop(1)
    for i in range(2): a(f'v_permlane16_swap_b32 v{acc[i]}, v{acc[i+2]}')
    a.nop(1)
    for i in range(2): a(f'v_add_f32 v{acc[i]}, v{acc[i]}, v{acc[i+2]}')
    return acc[0],acc[1]
def halve16(acc, rors):
    a.nop(2)
    for i in range(8): a(f'v_permlane32_swap_b32 v{acc[i]}, v{acc[i+8]}')
    a.nop(1)
    for i in range(8): a(f'v_add_f32 v{acc[i]}, v{acc[i]}, v{acc[i+8]}')
    a.nop(1)
    for i in range(4): a(f'v_permlane16_swap_b32 v{acc[i]}, v{acc[i+4]}')
    a.nop(1)
    for i in range(4): a(f'v_add_f32 v{acc[i]}, v{acc[i]}, v{acc[i+4]}')
    for ctl in rors:
        for i in range(4): dpp('v_add_f32',acc[i],acc[i],acc[i],ctl)
    return acc[:4]
def mul8(acc,w,sc,first,t0=42,t1=43):
    for k in range(4):
        a(f'v_lshlrev_b32 v{t0}, 16, v{w+k}\nv_and_b32 v{t1}, 0xffff0000, v{w+k}')
        op='v_mul_f32' if first else 'v_fmac_f32'
        a(f'{op} v{acc[2*k]}, v{sc}, v{t0}\n{op} v{acc[2*k+1]}, v{sc}, v{t1}')
def mulN(acc,w,n,sc,t0=42,t1=43):
    for k in range(n):
        a(f'v_lshlrev_b32 v{t0}, 16, v{w+k}\nv_and_b32 v{t1}, 0xffff0000, v{w+k}\nv_mul_f32 v{acc[2*k]}, v{sc}, v{t0}\nv_mul_f32 v{acc[2*k+1]}, v{sc}, v{t1}')
def ln_fin(vm,vs,t0):
    bf16r2(vm,vs,vm,vs,t0)
    a(f'v_add_f32 v{vs}, 0x3727c5ac, v{vs}')
    bf16r(vs,vs)
    a(f'v_sqrt_f32 v{vs}, v{vs}\ns_nop 0')
    bf16r(vs,vs)
def ln_stats(x8, vm, vs, t0):
    a(f'v_add_f32 v{vm}, v{x8[0]}, v{x8[1]}')
    for k in range(2,8): a(f'v_add_f32 v{vm}, v{vm}, v{x8[k]}')
    wave_allreduce('v_add_f32',[vm],[t0])
    a(f'v_mul_f32 v{vm}, 0x3b000000, v{vm}\nv_mov_b32 v{vs}, 0')
    for k in range(8): a(f'v_sub_f32 v{t0}, v{x8[k]}, v{vm}\nv_fmac_f32 v{vs}, v{t0}, v{t0}')
    wave_allreduce('v_add_f32',[vs],[t0])
    a(f'v_mul_f32 v{vs}, 0x3b000000, v{vs}')
    ln_fin(vm,vs,t0)
def div1(d,n,den,t0,t1):
    a(f'''v_rcp_f32 v{t0}, v{den}
    s_nop 0
    v_mul_f32 v{t1}, v{n}, v{t0}
    v_fma_f32 v{d}, -v{t1}, v{den}, v{n}
    v_fma_f32 v{d}, v{d}, v{t0}, v{t1}''')
def unpack8(dst, src):
    for k in range(4): a(f'v_and_b32 v{dst[2*k+1]}, 0xffff0000, v{src+k}\nv_lshlrev_b32 v{dst[2*k]}, 16, v{src+k}')
def sum8r(b):
    a(f'''v_add_f32 v{b}, v{b}, v{b+1}
    v_add_f32 v{b+2}, v{b+2}, v{b+3}
    v_add_f32 v{b+4}, v{b+4}, v{b+5}
    v_add_f32 v{b+6}, v{b+6}, v{b+7}
    v_add_f32 v{b}, v{b}, v{b+2}
    v_add_f32 v{b+4}, v{b+4}, v{b+6}
    v_add_f32 v{b}, v{b}, v{b+4}''')
def sum8_lds(off,stride,dst,addr):
    for w in range(8): a(f'ds_read_b32 v{8+w}, v{addr} offset:{off+w*stride}')
    a('s_waitcnt lgkmcnt(0)')
    sum8r(8)
    if dst!=8: a(f'v_mov_b32 v{dst}, v8')
lid=[0]
def L(p):
    lid[0]+=1; return f'{p}{lid[0]}'
def nstamp(nm):
    if TS and nm in NST:
        i=1+NST.index(nm)
        a(f's_memrealtime s[100:101]\ns_waitcnt lgkmcnt(0)\nv_mov_b32 v{TSV+2*i}, s100\nv_mov_b32 v{TSV+1+2*i}, s101')
def tsend():
    if not TS: return
    a(f'''s_waitcnt vmcnt(0)
    s_memrealtime s[100:101]
    s_mov_b64 exec, -1
    v_cmp_eq_u32 vcc, 0, v0
    s_and_saveexec_b64 s[36:37], vcc
    s_waitcnt lgkmcnt(0)
    v_mov_b32 v5, 0
    s_lshl_b32 s3, s2, 6
    s_add_u32 s3, s3, {TSOFF}
    v_mov_b32 v0, s100
    v_mov_b32 v1, s101
    v_mov_b32 v2, 0
    v_mov_b32 v3, 0
    buffer_store_dwordx4 v[{TSV}:{TSV+3}], v5, s[4:7], s3 offen
    buffer_store_dwordx4 v[{TSV+4}:{TSV+7}], v5, s[4:7], s3 offen offset:16
    buffer_store_dwordx4 v[{TSV+8}:{TSV+11}], v5, s[4:7], s3 offen offset:32
    buffer_store_dwordx4 v[0:3], v5, s[4:7], s3 offen offset:48''')
def gather(loads, regs):
    l0=L('GA'); l1=L('GD')
    a('s_mov_b32 s38, 0')
    a.label(l0)
    for x in loads: a(x+' '+SC1)
    a('s_add_u32 s38, s38, 1\ns_waitcnt vmcnt(0)')
    r=list(regs)
    if len(r)==1: a(f'v_mov_b32 v70, v{r[0]}'); i=1
    elif len(r)==2: a(f'v_max_u32 v70, v{r[0]}, v{r[1]}'); i=2
    else: a(f'v_max3_u32 v70, v{r[0]}, v{r[1]}, v{r[2]}'); i=3
    while i<len(r):
        if i+1<len(r): a(f'v_max3_u32 v70, v70, v{r[i]}, v{r[i+1]}'); i+=2
        else: a(f'v_max_u32 v70, v70, v{r[i]}'); i+=1
    a(f'''v_cmp_eq_u32 vcc, -1, v70
    s_cmp_gt_u32 s38, 0x40000
    s_cbranch_scc1 {l1}
    s_nop 2
    s_cmp_eq_u64 vcc, 0
    s_cbranch_scc1 {l1}
    s_sleep {SLP}
    s_branch {l0}''')
    a.label(l1)
def poll_dbg(word,val):
    l0=L('WA'); l1=L('WD')
    a('s_mov_b32 s38, 0\nv_mov_b32 v71, 0')
    a.label(l0)
    a(f'''buffer_load_dword v70, v71, {SD}, 0 offen offset:{4*word} {SC1}
    s_add_u32 s38, s38, 1
    s_waitcnt vmcnt(0)
    v_readfirstlane_b32 s3, v70
    s_cmp_gt_u32 s38, 0x40000
    s_cbranch_scc1 {l1}
    s_cmp_ge_u32 s3, {val}
    s_cbranch_scc1 {l1}
    s_sleep {DSL}
    s_branch {l0}''')
    a.label(l1)
def red8_w(acc, off):
    c0,c1=halve8(acc)
    a.nop(2)
    dpp('v_add_f32',c0,c0,c0,'row_ror:8'); dpp('v_add_f32',c1,c1,c1,'row_ror:8')
    a(f'ds_write_b64 v{VRED}, v[{c0}:{c1}] offset:{off}\ns_waitcnt lgkmcnt(0)')
BAR='s_barrier'

a.L.append(f'.globl {KN}\n.p2align 8\n.type {KN},@function\n{KN}:')
if TS:
    a(f's_memrealtime s[100:101]\ns_waitcnt lgkmcnt(0)\nv_mov_b32 v{TSV}, s100\nv_mov_b32 v{TSV+1}, s101')
    for i in range(TSV+2,TSV+12): a(f'v_mov_b32 v{i}, 0')
a(f'''s_cmp_ge_u32 s2, 256
s_cbranch_scc1 K_END
s_load_dwordx16 s[40:55], s[0:1], 0
s_load_dwordx16 s[56:71], s[0:1], 64
v_lshrrev_b32 v1, 6, v0
v_lshrrev_b32 v4, 3, v0
v_readfirstlane_b32 s39, v1
v_and_b32 v5, 7, v0
s_lshr_b32 s30, s2, 3
s_and_b32 s31, s2, 7
s_and_b32 s32, s2, 3
s_lshr_b32 s33, s2, 2
s_cmp_ge_u32 s39, 8
s_cbranch_scc1 AUX''')
a(f'''s_lshl_b32 s3, s32, 7
v_add_u32 v6, s3, v4
v_lshlrev_b32 v7, 1, v6
v_mul_u32_u24 v8, 0x1800, v6
v_lshl_add_u32 v8, v5, 4, v8
s_lshl_b32 s3, s33, 7
v_add_u32 v8, s3, v8
s_mov_b32 s34, 393216
v_lshlrev_b32 v9, 13, v6
v_lshl_add_u32 v9, v5, 4, v9
s_lshl_b32 s3, s30, 8
s_bfe_u32 s28, s2, 0x10002
s_lshl_b32 s28, s28, 7
s_add_u32 s3, s3, s28
v_add_u32 v9, s3, v9
s_mov_b32 s35, 0x80000
v_lshlrev_b32 v10, 13, v4
v_lshl_add_u32 v10, v5, 5, v10
s_lshl_b32 s3, s31, 19
s_lshl_b32 s28, s30, 8
s_add_u32 s74, s3, s28
v_lshlrev_b32 v12, 1, v0
s_lshl_b32 s3, s39, 8
v_lshlrev_b32 v{VRED}, 5, v5
v_add_u32 v{VRED}, s3, v{VRED}
v_bfe_u32 v2, v0, 4, 1
v_lshl_add_u32 v{VRED}, v2, 3, v{VRED}
v_bfe_u32 v2, v0, 5, 1
v_lshl_add_u32 v{VRED}, v2, 4, v{VRED}
s_and_b32 s77, s2, 7
s_lshr_b32 s3, s2, 5
s_lshl_b32 s3, s3, 3
s_or_b32 s77, s77, s3
s_bfe_u32 s78, s2, 0x20003
v_and_b32 v1, 63, v0
v_lshrrev_b32 v2, 3, v1
v_and_b32 v3, 7, v1
v_xor_b32 v3, v3, v2
v_lshlrev_b32 v3, 4, v3
v_lshl_add_u32 v{VDMA}, v2, 10, v3
s_lshl_b32 s3, s39, 7
s_lshl_b32 s29, s77, 16
s_add_u32 s29, s29, s3
s_mul_i32 s79, s39, {REG}
s_add_u32 s79, s79, {RB}
s_sub_u32 s76, s2, {G0}
s_waitcnt lgkmcnt(0)''')
srdp(S_WS,15,WSBYTES); srdp(S_X,0,1024); srdp(S_A,12,3145728); srdp(S_B,11,1024)
a('s_cmp_lt_u32 s2, 192\ns_cbranch_scc1 C_MLD')
srdp(S_DBG,14,256)
a(f'''s_sub_u32 s28, s2, 192
v_lshlrev_b32 v1, 4, v0
v_mov_b32 v16, -1
v_mov_b32 v17, -1
v_mov_b32 v18, -1
v_mov_b32 v19, -1
v_mov_b32 v20, 1
v_mov_b32 v21, 0
s_lshl_b32 s3, s28, 13
s_cmp_ge_u32 s28, 6
s_cbranch_scc1 C_INIT2
buffer_store_dwordx4 v[16:19], v1, {WS}, s3 offen {SC1}
s_waitcnt vmcnt(0)
s_barrier
v_cmp_eq_u32 vcc, 0, v0
s_and_saveexec_b64 s[36:37], vcc
buffer_atomic_add v20, v21, {SD}, 0 offen offset:128
s_mov_b64 exec, s[36:37]''')
a.label('C_INIT2')
a(f'''s_add_u32 s3, s3, 0x10000
buffer_store_dwordx4 v[16:19], v1, {WS}, s3 offen {SC1}
s_waitcnt vmcnt(0)
s_barrier
v_cmp_eq_u32 vcc, 0, v0
s_and_saveexec_b64 s[36:37], vcc
buffer_atomic_add v20, v21, {SD}, 0 offen
s_mov_b64 exec, s[36:37]
s_branch C_NOM''')
a.label('C_MLD')
a(f'''buffer_load_ushort v24, v7, {SB}, 0 offen
buffer_load_ushort v25, v7, {SB}, 0 offen offset:128
buffer_load_dwordx4 v[32:35], v8, {SA}, 0 offen
buffer_load_dwordx4 v[36:39], v8, {SA}, s34 offen''')
a.label('C_NOM')
srdp(S_A,2,4194304); srdp(S_B,3,4194304); srdp(S_C,1,4194304)
a(f'''buffer_load_dwordx4 v[{WQ}:{WQ+3}], v9, {SA}, 0 offen
buffer_load_dwordx4 v[{WQ+4}:{WQ+7}], v9, {SA}, s35 offen
buffer_load_dwordx4 v[{WUK}:{WUK+3}], v10, {SB}, s74 offen
buffer_load_dwordx4 v[{WUK+4}:{WUK+7}], v10, {SB}, s74 offen offset:16
buffer_load_ushort v{XE}, v12, {SX}, 0 offen''')
srdp(S_A,10,1024)
a(f'buffer_load_ushort v{B2}, v12, {SA}, 0 offen')
def dma(lo,hi):
    for i in range(lo,hi):
        a(f's_add_u32 m0, s79, {1024*i}\ns_add_u32 s3, s29, {8192*i}\nbuffer_load_dwordx4 v{VDMA}, {SC}, s3 offen lds')
def stage_uv():
    srdp(S_A,4,4194304); srdp(S_B,5,4194304)
    a(f'''v_lshrrev_b32 v4, 3, v0
    v_and_b32 v5, 7, v0
    v_lshlrev_b32 v10, 13, v4
    v_lshl_add_u32 v10, v5, 5, v10
    buffer_load_dwordx4 v[{WUV}:{WUV+3}], v10, {SA}, s74 offen
    buffer_load_dwordx4 v[{WUV+4}:{WUV+7}], v10, {SA}, s74 offen offset:16''')
def stage_o():
    a(f'''s_lshr_b32 s3, s2, 5
    s_lshl_b32 s3, s3, 19
    s_and_b32 s28, s2, 31
    s_lshl_b32 s28, s28, 5
    s_add_u32 s3, s3, s28
    v_lshrrev_b32 v11, 1, v0
    v_lshlrev_b32 v11, 10, v11
    v_and_b32 v15, 1, v0
    v_lshl_add_u32 v11, v15, 4, v11
    s_add_u32 s28, s3, 0x40000
    buffer_load_dwordx4 v[{WO}:{WO+3}], v11, {SB}, s3 offen
    buffer_load_dwordx4 v[{WO+4}:{WO+7}], v11, {SB}, s28 offen''')
def gload():
    srdp(S_A,7,512*2752); srdp(S_B,9,1376*1024)
    a(f'''v_lshrrev_b32 v6, 2, v0
    v_mul_u32_u24 v6, 2752, v6
    v_and_b32 v15, 3, v0
    v_lshl_add_u32 v6, v15, 4, v6
    s_lshl_b32 s28, s76, 6''')
    for q in range(4):
        a(f's_add_u32 s3, s28, {2752*128*q}\nbuffer_load_dwordx4 v[{W1+4*q}:{W1+4*q+3}], v6, {SA}, s3 offen')
    srdp(S_A,8,2752)
    a(f'''v_and_b32 v6, 31, v0
    v_lshlrev_b32 v6, 1, v6
    buffer_load_ushort v{B1}, v6, {SA}, s28 offen
    v_and_b32 v6, 255, v0
    v_lshlrev_b32 v6, 2, v6
    s_lshl_b32 s3, s76, 15
    s_lshr_b32 s28, s39, 2
    s_lshl_b32 s28, s28, 14
    s_add_u32 s3, s3, s28''')
    for d in range(16):
        if d%4==0 and d>0: a('s_add_u32 s3, s3, 4096')
        a(f'buffer_load_dword v{W2+d}, v6, {SB}, s3 offen offset:{1024*(d%4)}')
ND=8 if DMA0 else 0
if DMA0: dma(0,8)
a(f's_cmp_lt_u32 s2, {G0}\ns_cbranch_scc1 C_NOG')
gload()
a(f's_waitcnt vmcnt({23+ND})')
a.label('C_NOG')
a('s_cmp_ge_u32 s2, 192\ns_cbranch_scc1 C_M_DONE\ns_waitcnt vmcnt(%d)'%(8+ND))
for i in range(2): a(f'v_lshlrev_b32 v{24+i}, 16, v{24+i}\nv_mul_f32 v{28+i}, 0xbfb8aa3b, v{24+i}')
for i in range(2): a(f'v_exp_f32 v{28+i}, v{28+i}')
a('s_nop 0')
for i in range(2): a(f'v_add_f32 v{28+i}, 1.0, v{28+i}')
for i in range(2): a(f'v_rcp_f32 v{28+i}, v{28+i}')
a('s_nop 0')
for i in range(2): a(f'v_mul_f32 v{24+i}, v{24+i}, v{28+i}')
bf16r2(24,25,24,25,28)
acc=list(range(48,56))
a(f's_waitcnt vmcnt({6+ND})')
mul8(acc,32,24,True); mul8(acc,36,25,False)
red8_w(acc,0)
a.label('C_M_DONE')
nstamp('m_pre')
a(BAR)
nstamp('m_done')
if not DMA0:
    a(BAR)
    dma(0,4)
a(f's_cmp_ge_u32 s2, {G0}\ns_cbranch_scc1 CW1\ns_waitcnt vmcnt({12 if DMA0 else 8})')
a.label('CW1')
a('v_lshlrev_b32 v3, 2, v4')
a(BAR)
nstamp('a_gath')
a('ds_read_b32 v40, v3 offset:4096\nds_read_b32 v41, v3 offset:4352\ns_waitcnt lgkmcnt(0)')
mul8(acc,WQ,40,True); mul8(acc,WQ+4,41,False)
red8_w(acc,2048)
a(BAR)
nstamp('a_done')
if not DMA0:
    a(BAR)
    dma(4,8)
a(f's_cmp_ge_u32 s2, {G0}\ns_cbranch_scc1 CW2\ns_waitcnt vmcnt(10)')
a.label('CW2')
a('v_lshlrev_b32 v1, 6, v5')
a(BAR)
nstamp('b_gath')
for q in range(4): a(f'ds_read_b128 v[{16+4*q}:{19+4*q}], v1 offset:{4608+16*q}')
a('s_waitcnt lgkmcnt(0)')
for k in range(8):
    a(f'v_lshlrev_b32 v42, 16, v{WUK+k}\nv_and_b32 v43, 0xffff0000, v{WUK+k}')
    if k==0: a('v_mul_f32 v48, v16, v42\nv_mul_f32 v49, v17, v43')
    else: a(f'v_fmac_f32 v48, v{16+2*k}, v42\nv_fmac_f32 v49, v{17+2*k}, v43')
a('v_add_f32 v48, v48, v49')
for ctl in ['quad_perm:[1,0,3,2]','quad_perm:[2,3,0,1]','row_half_mirror']:
    a.nop(2); dpp('v_add_f32',48,48,48,ctl)
a(f'''v_cvt_pk_bf16_f32 v49, v48, v48
v_and_b32 v50, 0xffff0000, v49
v_sub_f32 v48, v48, v50
v_cvt_pk_bf16_f32 v48, v48, v48
v_and_b32 v49, 0xffff, v49
v_lshl_or_b32 v48, v48, 16, v49
v_lshlrev_b32 v1, 2, v4
s_lshl_b32 s3, s2, 8
s_add_u32 s3, s3, {QA}
v_cmp_eq_u32 vcc, 0, v5
s_and_saveexec_b64 s[36:37], vcc
buffer_store_dword v48, v1, {WS}, s3 offen {SC1}
s_mov_b64 exec, s[36:37]''')
a(BAR)
nstamp('b_done')
if not UVC: stage_uv()
a(f'''v_and_b32 v1, 63, v0
v_lshrrev_b32 v2, 4, v1
v_and_b32 v3, 15, v1
v_min_u32 v6, 7, v3
v_lshlrev_b32 v6, 11, v6
v_lshl_add_u32 v6, v2, 5, v6
s_lshl_b32 s24, s78, 14
s_lshl_b32 s26, s39, 8
s_add_u32 s24, s24, s26
s_add_u32 s24, s24, {QA}
v_and_b32 v7, 7, v3
v_xor_b32 v7, v7, v2
v_lshlrev_b32 v7, 4, v7
v_lshl_add_u32 v7, v3, 7, v7
v_add_u32 v7, s79, v7
v_xor_b32 v8, 64, v7
v_and_b32 v9, 7, v3
v_lshl_add_u32 v11, v2, 3, v9
v_lshlrev_b32 v11, 4, v11
s_lshl_b32 s3, s39, 11
v_add_u32 v12, s3, v11
s_mov_b32 s25, 0x05040100
s_mov_b32 s26, 0x07060302''')
D1=56
for r in range(16): a(f'v_mov_b32 v{D1+r}, 0')
gather([f'buffer_load_dwordx4 v[{16+4*q}:{19+4*q}], v6, {WS}, s24 offen offset:{(q>>1)*128+(q&1)*16}' for q in range(4)], range(16,32))
nstamp('c_gath')
a('v_mov_b32 v70, 0\nv_mov_b32 v71, 0\nv_mov_b32 v14, v11')
if UVC: stage_uv(); stage_o()
a('v_mov_b32 v11, v14')
for s_ in range(2):
    for k in range(4):
        x0=16+8*s_+2*k
        a(f'v_perm_b32 v{32+4*s_+k}, v{x0+1}, v{x0}, s25\nv_perm_b32 v{40+4*s_+k}, v{x0+1}, v{x0}, s26')
for T in range(4):
    base=16+8*(T&1)
    a(f'ds_read_b128 v[{base}:{base+3}], v7 offset:{2048*T}\nds_read_b128 v[{base+4}:{base+7}], v8 offset:{2048*T}')
    for s_ in range(2):
        a(f's_waitcnt lgkmcnt({1-s_})')
        a(f'v_mfma_f32_16x16x32_bf16 v[{D1+4*T}:{D1+4*T+3}], v[{base+4*s_}:{base+4*s_+3}], v[{32+4*s_}:{35+4*s_}], v[{D1+4*T}:{D1+4*T+3}]')
        a(f'v_mfma_f32_16x16x32_bf16 v[{D1+4*T}:{D1+4*T+3}], v[{base+4*s_}:{base+4*s_+3}], v[{40+4*s_}:{43+4*s_}], v[{D1+4*T}:{D1+4*T+3}]')
a('v_cmp_gt_u32 vcc, 8, v3\ns_and_saveexec_b64 s[36:37], vcc')
a.nop(7)
for T in range(4): a(f'ds_write_b128 v12, v[{D1+4*T}:{D1+4*T+3}] offset:{XCH+512*T}')
a('s_mov_b64 exec, s[36:37]\ns_waitcnt lgkmcnt(0)')
a(BAR)
nstamp('c_g1')
P0=16
for w in range(8):
    dst=P0 if w==0 else 32+16*((w-1)%2)
    for T in range(4): a(f'ds_read_b128 v[{dst+4*T}:{dst+4*T+3}], v11 offset:{XCH+(w*4+T)*512}')
    if w>=2:
        src=32+16*((w-2)%2)
        a('s_waitcnt lgkmcnt(4)')
        for r in range(16): a(f'v_add_f32 v{P0+r}, v{P0+r}, v{src+r}')
a('s_waitcnt lgkmcnt(0)')
for r in range(16): a(f'v_add_f32 v{P0+r}, v{P0+r}, v{32+r}')
for r in range(0,16,2):
    bf16r2(P0+r,P0+r+1,P0+r,P0+r+1,12)
    a(f'v_mul_f32 v{P0+r}, 0x3db504f3, v{P0+r}\nv_mul_f32 v{P0+r+1}, 0x3db504f3, v{P0+r+1}')
    bf16r2(P0+r,P0+r+1,P0+r,P0+r+1,12)
a(f'v_max_f32 v32, v{P0}, v{P0+1}')
for r in range(2,16,2): a(f'v_max3_f32 v32, v32, v{P0+r}, v{P0+r+1}')
for sw in ['v_permlane16_swap_b32','v_permlane32_swap_b32']:
    a(f'v_mov_b32 v33, v32\ns_nop 1\n{sw} v32, v33\ns_nop 1\nv_max_f32 v32, v32, v33')
a(f's_mov_b32 s3, {LOG2E}\nv_mul_f32 v33, s3, v32')
for r in range(16): a(f'v_fma_f32 v{P0+r}, v{P0+r}, s3, -v33')
for r in range(16): a(f'v_exp_f32 v{P0+r}, v{P0+r}')
a(f'''v_lshrrev_b32 v7, 2, v3
v_lshl_add_u32 v7, v2, 2, v7
v_and_b32 v8, 7, v7
v_bfe_u32 v9, v1, 1, 1
v_xor_b32 v8, v8, v9
v_lshlrev_b32 v8, 4, v8
v_lshl_add_u32 v8, v7, 7, v8
v_and_b32 v9, 1, v1
v_lshl_add_u32 v8, v9, 3, v8
v_add_u32 v8, s79, v8''')
for kk in range(2):
    for hh in range(2):
        T=2*kk+hh
        a(f'v_cvt_pk_bf16_f32 v{40+4*kk+2*hh}, v{P0+4*T}, v{P0+4*T+1}\nv_cvt_pk_bf16_f32 v{41+4*kk+2*hh}, v{P0+4*T+2}, v{P0+4*T+3}')
nstamp('c_sm')
D2=56
for r in range(16): a(f'v_mov_b32 v{D2+r}, 0')
FRG=[72,76,80,84,48,52,16,20]
def rdt(t):
    a(f'v_xor_b32 v13, {t<<5}, v8')
    for kk in range(2):
        f=FRG[t*2+kk]
        a(f'ds_read_b64_tr_b16 v[{f}:{f+1}], v13 offset:{2048*(2*kk)}\nds_read_b64_tr_b16 v[{f+2}:{f+3}], v13 offset:{2048*(2*kk+1)}')
rdt(0); rdt(1); rdt(2)
a(f'v_add_f32 v34, v{P0}, v{P0+1}')
for r in range(2,16): a(f'v_add_f32 v34, v34, v{P0+r}')
rdt(3)
for sw in ['v_permlane16_swap_b32','v_permlane32_swap_b32']:
    a(f'v_mov_b32 v33, v34\ns_nop 1\n{sw} v34, v33\ns_nop 1\nv_add_f32 v34, v34, v33')
for t in range(4):
    for kk in range(2):
        f=FRG[t*2+kk]
        a(f's_waitcnt lgkmcnt({14-2*(t*2+kk)})')
        a(f'v_mfma_f32_16x16x32_bf16 v[{D2+4*t}:{D2+4*t+3}], v[{f}:{f+3}], v[{40+4*kk}:{43+4*kk}], v[{D2+4*t}:{D2+4*t+3}]')
a(f'''v_lshlrev_b32 v10, 7, v3
v_lshl_add_u32 v10, v2, 3, v10
v_add_u32 v10, s79, v10
v_lshlrev_b32 v11, 4, v1
v_add_u32 v11, s79, v11
v_lshrrev_b32 v12, 3, v1
v_lshlrev_b32 v12, 16, v12
v_and_b32 v13, 7, v1
v_lshl_add_u32 v12, v13, 4, v12
s_lshl_b32 s24, s78, 19
s_lshl_b32 s26, s77, 10
s_add_u32 s24, s24, s26
s_lshl_b32 s26, s39, 7
s_add_u32 s24, s24, s26
s_add_u32 s24, s24, {PART}
s_lshl_b32 s25, s78, 12
s_lshl_b32 s26, s77, 3
s_add_u32 s25, s25, s26
s_add_u32 s25, s25, {STAT}
v_lshlrev_b32 v9, 9, v3
v_mov_b32 v35, v34
v_mov_b32 v34, v32
v_cmp_gt_u32 vcc, 8, v3
s_and_saveexec_b64 s[36:37], vcc''')
for t in range(4):
    a(f'v_cvt_pk_bf16_f32 v{16+2*t}, v{D2+4*t}, v{D2+4*t+1}\nv_cvt_pk_bf16_f32 v{17+2*t}, v{D2+4*t+2}, v{D2+4*t+3}')
    a(f'ds_write_b64 v10, v[{16+2*t}:{17+2*t}] offset:{32*t}')
a(f'''s_mov_b64 exec, s[36:37]
s_waitcnt lgkmcnt(0)
ds_read_b128 v[16:19], v11
s_waitcnt lgkmcnt(0)
buffer_store_dwordx4 v[16:19], v12, {WS}, s24 offen {SC1}
s_waitcnt vmcnt(0)''')
a(BAR)
a(f'''v_cmp_gt_u32 vcc, 8, v0
s_and_saveexec_b64 s[36:37], vcc
buffer_store_dwordx2 v[34:35], v9, {WS}, s25 offen {SC1}
s_mov_b64 exec, s[36:37]''')
nstamp('c_done')
if not UVC: stage_o()
a(f'''v_lshrrev_b32 v4, 3, v0
v_and_b32 v5, 7, v0
v_lshlrev_b32 v6, 10, v4
v_lshl_add_u32 v6, v5, 4, v6
s_lshl_b32 s24, s30, 16
s_lshl_b32 s26, s31, 7
s_add_u32 s24, s24, s26
s_add_u32 s24, s24, {PART}
v_and_b32 v1, 63, v0
v_lshlrev_b32 v7, 3, v1
s_lshl_b32 s25, s30, 9
s_add_u32 s25, s25, {STAT}''')
gather([f'buffer_load_dwordx2 v[40:41], v7, {WS}, s25 offen'], [40,41])
a(f'buffer_load_dwordx4 v[16:19], v6, {WS}, s24 offen {SC1}')
nstamp('d_gath')
a('v_mov_b32 v42, v40')
wave_allreduce('v_max_f32',[42],[43])
a(f'''v_sub_f32 v40, v40, v42
v_mul_f32 v40, {LOG2E}, v40
v_exp_f32 v40, v40
s_nop 0
v_mul_f32 v41, v41, v40''')
wave_allreduce('v_add_f32',[41],[43])
a('''v_rcp_f32 v41, v41
v_lshlrev_b32 v42, 2, v4
v_mul_f32 v40, v40, v41
s_nop 0
ds_bpermute_b32 v40, v42, v40
s_waitcnt vmcnt(0) lgkmcnt(0)''')
mul8(acc,16,40,True)
red8_w(acc,0)
a('v_lshlrev_b32 v3, 2, v4')
a(BAR)
sum8_lds(0,256,40,3)
acc16=list(range(16,32))
mulN(acc16,WUV,8,40)
halve16(acc16,['row_ror:8'])
a(f'''s_lshl_b32 s3, s39, 9
v_lshlrev_b32 v1, 6, v5
v_add_u32 v1, s3, v1
v_bfe_u32 v2, v0, 4, 2
v_lshl_add_u32 v1, v2, 4, v1
ds_write_b128 v1, v[16:19] offset:4096
s_waitcnt lgkmcnt(0)''')
a(BAR)
nstamp('d_done')
a(f'''v_lshrrev_b32 v1, 7, v0
v_lshlrev_b32 v1, 12, v1
v_and_b32 v2, 127, v0
v_lshl_add_u32 v1, v2, 2, v1
s_lshr_b32 s3, s2, 5
s_lshl_b32 s3, s3, 14
s_add_u32 s3, s3, {CP}''')
gather([f'buffer_load_dword v{16+j}, v1, {WS}, s3 offen offset:{512*j}' for j in range(8)], range(16,24))
nstamp('e_gath')
sum8r(16)
bf16r(16,16)
a(f'''v_lshlrev_b32 v1, 2, v0
ds_write_b32 v1, v16 offset:8192
v_lshrrev_b32 v3, 1, v0
v_lshlrev_b32 v3, 2, v3
s_waitcnt lgkmcnt(0)''')
a(BAR)
a('ds_read_b32 v40, v3 offset:8192\nds_read_b32 v41, v3 offset:9216\ns_waitcnt lgkmcnt(0)')
mul8(acc,WO,40,True); mul8(acc,WO+4,41,False)
c0,c1=halve8(acc)
for ctl in ['row_ror:8','row_ror:4','row_ror:2']:
    a.nop(2); dpp('v_add_f32',c0,c0,c0,ctl); dpp('v_add_f32',c1,c1,c1,ctl)
a(f'''s_lshl_b32 s3, s39, 6
v_and_b32 v5, 1, v0
v_lshlrev_b32 v3, 5, v5
v_add_u32 v3, s3, v3
v_bfe_u32 v5, v0, 4, 1
v_lshl_add_u32 v3, v5, 3, v3
v_bfe_u32 v5, v0, 5, 1
v_lshl_add_u32 v3, v5, 4, v3
ds_write_b64 v3, v[{c0}:{c1}] offset:12288
s_waitcnt lgkmcnt(0)''')
a(BAR)
nstamp('e_done')
a(f'''s_cmp_lt_u32 s2, {H0}
s_cbranch_scc1 K_TS
v_lshlrev_b32 v1, 4, v0
v_add_u32 v1, {MGL}, v1
ds_read_b128 v[{MG}:{MG+3}], v1
s_cmp_lt_u32 s2, {G0}
s_cbranch_scc1 H_GO''')
a(f'''v_lshlrev_b32 v1, 2, v0
s_mov_b32 s3, {OP}
s_add_u32 s24, s3, 4096
s_add_u32 s25, s3, 8192
s_add_u32 s26, s3, 12288''')
gather([f'buffer_load_dword v{16+k}, v1, {WS}, s{3 if k<2 else 23+k//2} offen offset:{2048*(k%2)}' for k in range(8)], range(16,24))
nstamp('g_gath')
sum8r(16)
bf16r(16,16)
a(f's_waitcnt lgkmcnt(0)\nv_mul_f32 v16, v16, v{MG}')
bf16r(16,16)
a(f'v_lshlrev_b32 v17, 16, v{XE}\nv_add_f32 v16, v16, v17')
bf16r(16,16)
a(f's_lshl_b32 s3, s39, 3\nv_mov_b32 v3, s3\nv_mov_b32 v2, 0')
def ln_wg(x,slot):
    a(f'v_mov_b32 v44, v{x}\nv_mul_f32 v45, v{x}, v{x}')
    wave_allreduce('v_add_f32',[44,45],[46,47])
    a(f'''ds_write_b64 v3, v[44:45] offset:{slot}
    s_waitcnt lgkmcnt(0)
    s_barrier
    ds_read_b128 v[20:23], v2 offset:{slot}
    ds_read_b128 v[24:27], v2 offset:{slot+16}
    ds_read_b128 v[28:31], v2 offset:{slot+32}
    ds_read_b128 v[32:35], v2 offset:{slot+48}
    s_waitcnt lgkmcnt(0)
    v_add_f32 v20, v20, v22
    v_add_f32 v21, v21, v23
    v_add_f32 v24, v24, v26
    v_add_f32 v25, v25, v27
    v_add_f32 v28, v28, v30
    v_add_f32 v29, v29, v31
    v_add_f32 v32, v32, v34
    v_add_f32 v33, v33, v35
    v_add_f32 v20, v20, v24
    v_add_f32 v21, v21, v25
    v_add_f32 v28, v28, v32
    v_add_f32 v29, v29, v33
    v_add_f32 v44, v20, v28
    v_add_f32 v45, v21, v29
    v_mul_f32 v44, 0x3b000000, v44
    v_mul_f32 v45, 0x3b000000, v45
    v_fma_f32 v45, -v44, v44, v45
    v_max_f32 v45, 0, v45''')
    ln_fin(44,45,46)
    a(f'v_sub_f32 v{x}, v{x}, v44')
    bf16r(x,x)
    div1(20,x,45,22,23)
    bf16r(x,20)
ln_wg(16,8192)
a(f'v_mul_f32 v16, v16, v{MG+2}')
bf16r(16,16)
a(f'v_add_f32 v16, v16, v{MG+1}')
bf16r(16,16)
ln_wg(16,8320)
nstamp('g_ln')
a(f'''v_lshlrev_b32 v1, 2, v0
ds_write_b32 v1, v16
v_lshrrev_b32 v3, 2, v0
v_lshlrev_b32 v3, 2, v3
s_waitcnt lgkmcnt(0)
s_barrier''')
for q in range(4): a(f'ds_read_b32 v{20+q}, v3 offset:{512*q}')
a('s_waitcnt lgkmcnt(0)')
for q in range(4): mul8(acc,W1+4*q,20+q,q==0)
c0,c1=halve8(acc)
for ctl in ['row_ror:8','row_ror:4']:
    a.nop(2); dpp('v_add_f32',c0,c0,c0,ctl); dpp('v_add_f32',c1,c1,c1,ctl)
a(f'''s_lshl_b32 s3, s39, 7
v_and_b32 v5, 3, v0
v_lshlrev_b32 v3, 5, v5
v_add_u32 v3, s3, v3
v_bfe_u32 v5, v0, 4, 1
v_lshl_add_u32 v3, v5, 3, v3
v_bfe_u32 v5, v0, 5, 1
v_lshl_add_u32 v3, v5, 4, v3
ds_write_b64 v3, v[{c0}:{c1}] offset:9216
s_lshr_b32 s28, s39, 2
s_lshl_b32 s28, s28, 4
v_add_u32 v3, s28, v0
v_and_b32 v3, 31, v3
v_lshlrev_b32 v3, 2, v3
ds_bpermute_b32 v45, v3, v{B1}
s_waitcnt lgkmcnt(0)
s_barrier''')
sum8_lds(9216,128,8,3)
bf16r(8,8)
a('v_lshlrev_b32 v45, 16, v45\nv_add_f32 v8, v8, v45')
bf16r(8,8)
a('''v_mul_f32 v9, v8, v8
v_mov_b32 v10, 0x3d372713
v_fma_f32 v9, v9, v10, 1.0
v_mul_f32 v9, v9, v8
v_mul_f32 v9, 0xc0135761, v9
v_exp_f32 v9, v9
s_nop 0
v_add_f32 v9, 1.0, v9
v_rcp_f32 v9, v9
s_nop 0
v_mul_f32 v8, v8, v9''')
bf16r(8,8)
a('s_nop 0')
for k in range(16): a(f'v_readlane_b32 s{80+k}, v8, {k}')
a('s_nop 1')
for d in range(16):
    a(f'v_lshlrev_b32 v44, 16, v{W2+d}\nv_and_b32 v45, 0xffff0000, v{W2+d}')
    op='v_mul_f32' if d==0 else 'v_fmac_f32'
    a(f'{op} v42, s{80+d}, v44\n{op} v43, s{80+d}, v45')
a(f'''v_and_b32 v1, 255, v0
v_lshlrev_b32 v1, 3, v1
s_cmp_lt_u32 s39, 4
s_cbranch_scc1 G_LO
ds_write_b64 v1, v[42:43] offset:10240
s_waitcnt lgkmcnt(0)
s_barrier
s_branch K_TS''')
a.label('G_LO')
a(f'''s_barrier
ds_read_b64 v[44:45], v1 offset:10240
s_lshl_b32 s3, s76, 11
s_add_u32 s3, s3, {O2P}
s_waitcnt lgkmcnt(0)
v_add_f32 v42, v42, v44
v_add_f32 v43, v43, v45
buffer_store_dwordx2 v[42:43], v1, {WS}, s3 offen {SC1}''')
nstamp('g_done')
a('s_branch K_TS')
a.label('H_GO')
a(f'''s_sub_u32 s28, s2, {H0}
v_lshrrev_b32 v4, 4, v0
v_and_b32 v5, 15, v0
v_lshlrev_b32 v1, 11, v4
v_lshl_add_u32 v1, v5, 4, v1
s_lshl_b32 s3, s28, 8
s_add_u32 s24, s3, {OP}
s_add_u32 s25, s3, {O2P}
s_add_u32 s26, s25, 65536''')
for r in list(range(16,20))+list(range(24,28)): a(f'v_mov_b32 v{r}, 0')
a('s_cmp_ge_u32 s39, 2\ns_cbranch_scc1 H_SK0')
gather([f'buffer_load_dwordx4 v[16:19], v1, {WS}, s24 offen'], range(16,20))
a.label('H_SK0')
def red4(regs,off):
    for sw in ['v_permlane16_swap_b32','v_permlane32_swap_b32']:
        for i,r in enumerate(regs): a(f'v_mov_b32 v{44+i}, v{r}')
        a.nop(1)
        for i,r in enumerate(regs): a(f'{sw} v{r}, v{44+i}')
        a.nop(1)
        for i,r in enumerate(regs): a(f'v_add_f32 v{r}, v{r}, v{44+i}')
    a(f's_lshl_b32 s3, s39, 8\nv_lshl_add_u32 v2, v5, 4, s3\nds_write_b128 v2, v[{regs[0]}:{regs[3]}] offset:{off}')
red4([16,17,18,19],0)
a(f'''v_lshlrev_b32 v6, 4, v0
s_waitcnt lgkmcnt(0)
v_mov_b32 v16, v{MG}
v_mov_b32 v17, v{MG+3}
v_lshlrev_b32 v18, 16, v{XE}
v_lshlrev_b32 v19, 16, v{B2}
ds_write_b128 v6, v[16:19] offset:4096
v_cmp_gt_u32 vcc, {NG5-32}, v4
s_and_saveexec_b64 s[34:35], vcc
s_cbranch_execz H_SK''')
gather([f'buffer_load_dwordx4 v[24:27], v1, {WS}, s26 offen'], range(24,28))
a.label('H_SK')
a('s_mov_b64 exec, s[34:35]')
gather([f'buffer_load_dwordx4 v[20:23], v1, {WS}, s25 offen'], range(20,24))
nstamp('h_gath')
for c_ in range(4): a(f'v_add_f32 v{20+c_}, v{20+c_}, v{24+c_}')
red4([20,21,22,23],2048)
a(f'''s_waitcnt lgkmcnt(0)
s_barrier
s_cmp_lg_u32 s39, 0
s_cbranch_scc1 K_TS
s_lshl_b32 s3, s28, 10
v_add_u32 v2, s3, v6
ds_read_b128 v[24:27], v2 offset:4096
v_lshlrev_b32 v1, 2, v0''')
sum8_lds(0,256,16,1)
sum8_lds(2048,256,17,1)
bf16r2(16,17,16,17,20)
a('v_mul_f32 v16, v16, v24\nv_add_f32 v17, v17, v27')
bf16r2(16,17,16,17,20)
a('v_add_f32 v16, v16, v26\nv_mul_f32 v17, v17, v25')
bf16r2(16,17,16,17,20)
srdp(S_A,13,1024)
a(f'''v_add_f32 v16, v16, v17
v_cvt_pk_bf16_f32 v16, v16, v16
v_lshlrev_b32 v1, 1, v0
s_lshl_b32 s3, s28, 7
buffer_store_short v16, v1, {SA}, s3 offen''')
a.label('K_TS')
tsend(); a('s_endpgm')
a.label('AUX')
a(f'''v_subrev_u32 v0, 512, v0
v_and_b32 v11, 63, v0
v_lshlrev_b32 v11, 4, v11
s_lshl_b32 s3, s32, 8
v_lshl_add_u32 v6, v0, 1, s3
s_waitcnt lgkmcnt(0)''')
srdp(S_WS,15,WSBYTES); srdp(S_DBG,14,256); srdp(S_X,0,1024)
a(f'''buffer_load_dwordx4 v[56:59], v11, {SX}, 0 offen
buffer_load_ushort v46, v6, {SX}, 0 offen
s_cmp_lt_u32 s2, 192
s_cbranch_scc1 X_NOINIT
s_barrier
s_cmp_ge_u32 s2, 198
s_cbranch_scc1 X_NOINIT
s_barrier''')
a.label('X_NOINIT')
a('s_waitcnt vmcnt(0)')
x8=list(range(60,68)); unpack8(x8,56)
ln_stats(x8,44,45,47)
a('v_lshlrev_b32 v46, 16, v46\nv_sub_f32 v46, v46, v44')
bf16r(46,46)
div1(18,46,45,20,21)
bf16r(46,18)
a(f'''v_lshlrev_b32 v1, 2, v0
s_cmp_ge_u32 s2, 192
s_cbranch_scc1 X_B1
s_cmp_lg_u32 s39, 8
s_cbranch_scc1 X_B1''')
poll_dbg(32,6)
a.label('X_B1')
a(BAR)
a(f'''s_cmp_ge_u32 s2, 192
s_cbranch_scc1 X_A
s_cmp_lg_u32 s39, 8
s_cbranch_scc1 X_A''')
sum8_lds(0,256,8,1)
a(f'''s_mul_i32 s3, s32, 12288
s_lshl_b32 s28, s33, 8
s_add_u32 s3, s3, s28
buffer_store_dword v8, v1, {WS}, s3 offen offset:{MODP} {SC1}''')
a.label('X_A')
if not DMA0: a(BAR)
a('v_lshlrev_b32 v6, 1, v6\ns_mov_b32 s25, 12288\ns_mov_b32 s26, 24576\ns_mov_b32 s27, 36864')
gather([f'buffer_load_dword v{16+2*p+k}, v6, {WS}, {"0" if p==0 else "s%d"%(24+p)} offen offset:{MODP+k*2048}' for p in range(4) for k in range(2)], range(16,24))
a('''v_add_f32 v16, v16, v18
v_add_f32 v20, v20, v22
v_add_f32 v17, v17, v19
v_add_f32 v21, v21, v23
v_add_f32 v16, v16, v20
v_add_f32 v17, v17, v21''')
bf16r2(16,17,16,17,47)
a('v_add_f32 v17, 1.0, v17')
bf16r(17,17)
a('v_mul_f32 v18, v46, v17')
bf16r(18,18)
a('v_add_f32 v18, v18, v16')
bf16r(18,18)
a('ds_write_b32 v1, v18 offset:4096\ns_waitcnt lgkmcnt(0)')
a(BAR)
a('s_cmp_lg_u32 s39, 8\ns_cbranch_scc1 X_B3')
poll_dbg(0,64)
a.label('X_B3')
a(BAR)
a('s_cmp_lg_u32 s39, 8\ns_cbranch_scc1 X_Q')
sum8_lds(2048,256,8,1)
a(f'''s_lshl_b32 s3, s2, 8
s_add_u32 s3, s3, {QP}
buffer_store_dword v8, v1, {WS}, s3 offen {SC1}''')
a.label('X_Q')
if not DMA0: a(BAR)
a(f'''v_and_b32 v7, 63, v0
v_lshlrev_b32 v7, 2, v7
s_lshl_b32 s3, s30, 11
s_sub_u32 s28, s39, 8
s_lshl_b32 s28, s28, 10
s_add_u32 s3, s3, s28
s_add_u32 s3, s3, {QP}''')
gather([f'buffer_load_dword v{16+m}, v7, {WS}, s3 offen offset:{256*m}' for m in range(4)], range(16,20))
a('''v_add_f32 v16, v16, v17
v_add_f32 v18, v18, v19
v_add_f32 v16, v16, v18''')
bf16r(16,16)
a('ds_write_b32 v1, v16 offset:4608\ns_waitcnt lgkmcnt(0)')
a(BAR)
a(BAR)
a(BAR)
a(f'''s_cmp_lt_u32 s2, {H0}
s_cbranch_scc1 X_MGD
s_mov_b32 s24, 4096
s_mov_b32 s25, {4096+12288}
s_mov_b32 s26, {4096+24576}
s_mov_b32 s27, {4096+36864}
v_add_u32 v6, 4096, v1''')
gather([f'buffer_load_dword v{72+16*rr+4*p+k}, v{1 if k<2 else 6}, {WS}, s{24+p} offen offset:{MODP+(k%2)*2048+512*rr}' for rr in range(4) for p in range(4) for k in range(4)], range(72,136))
for rr in range(4):
    b=72+16*rr
    for k in range(4): a(f'v_add_f32 v{b+k}, v{b+k}, v{b+4+k}\nv_add_f32 v{b+8+k}, v{b+8+k}, v{b+12+k}\nv_add_f32 v{b+k}, v{b+k}, v{b+8+k}')
    bf16r2(b,b+1,b,b+1,20); bf16r2(b+2,b+3,b+2,b+3,20)
    a(f'v_add_f32 v{b+2}, 1.0, v{b+2}')
    bf16r(b+2,b+2)
    a(f'v_lshlrev_b32 v7, 2, v1\nv_add_u32 v7, {MGL+2048*rr}, v7\nds_write_b128 v7, v[{b}:{b+3}]')
a('s_waitcnt lgkmcnt(0)')
a.label('X_MGD')
a(BAR)
a(BAR)
a(BAR)
sum8_lds(4096,512,8,1)
a(f'''s_lshl_b32 s3, s2, 9
s_add_u32 s3, s3, {CP}
buffer_store_dword v8, v1, {WS}, s3 offen {SC1}''')
a(BAR)
a(BAR)
a(f'''s_cmp_lg_u32 s39, 8
s_cbranch_scc1 X_END
v_cmp_gt_u32 vcc, 16, v0
s_and_saveexec_b64 s[36:37], vcc''')
sum8_lds(12288,64,8,1)
a(f'''s_lshr_b32 s3, s2, 5
s_lshl_b32 s3, s3, 11
s_and_b32 s28, s2, 31
s_lshl_b32 s28, s28, 6
s_add_u32 s3, s3, s28
s_add_u32 s3, s3, {OP}
buffer_store_dword v8, v1, {WS}, s3 offen {SC1}''')
a.label('X_END')
a.label('K_END'); a('s_endpgm')

KD=f'''.amdhsa_kernel {KN}
  .amdhsa_next_free_vgpr 160
  .amdhsa_next_free_sgpr 102
  .amdhsa_accum_offset 160
  .amdhsa_group_segment_fixed_size 0
  .amdhsa_kernarg_size 128
  .amdhsa_user_sgpr_count 2
  .amdhsa_user_sgpr_kernarg_segment_ptr 1
  .amdhsa_system_sgpr_workgroup_id_x 1
.end_amdhsa_kernel'''
out=[l for l in HDR if l.startswith(';') and '@launch' not in l and 'Override' not in l and 'grid=ceil' not in l]
out.append(f'; @launch grid=(256,1,1) block=(640,1,1) lds={LDS}')
out.append('.amdgcn_target "amdgcn-amd-amdhsa--gfx950"\n.text')
out+=a.L
out.append('.section .rodata,"a"\n.p2align 6\n'+KD)
dst=sys.argv[1] if len(sys.argv)>1 else 'cdna_kernels/%s.s'%NAME
open(dst,'w').write('\n'.join(out)+'\n')
print('wrote',dst,len(a.L),'lines')
```

```python
import sys, os
NAME='adaLN_cond__compressed_kv_cla__mixer_channel_mlp__decode'
HDR=open('cdna_kernels/%s.s.ref'%NAME).read().split('\n')
KN=NAME+'_kernel'
TS=os.environ.get('TS','0')=='1'
NST=os.environ.get('NST','').split(',')
SLP=os.environ.get('SLP','1')
DSL=os.environ.get('DSL','2')
SC1='sc1'
DMA0=os.environ.get('DMA0','0')=='1'
UVC=os.environ.get('UVC','0')=='1'
MODP=0x0
QP=0x10000
QA=0x20000
STAT=0x30000
CP=0x40000
OP=0x60000
O2P=0x70000
PART=0x100000
TSOFF=0x500000
WSBYTES=0x600000
XCH=0; RB=16384; REG=64*128; MGL=RB+8*REG; LDS=MGL+8192
NG5=43; G0=213; H0=205
WQ=72; WUK=80; WUV=88; WO=96; TSV=104; VDMA=119; XE=120; B1=121; B2=122; VRED=123; MG=124; W1=128; W2=144
S_WS=4; S_DBG=8; S_X=12; S_A=16; S_B=20; S_C=96; P=40
LOG2E='0x3fb8aa3b'
WS=f's[{S_WS}:{S_WS+3}]'
SA=f's[{S_A}:{S_A+3}]'; SB=f's[{S_B}:{S_B+3}]'; SC=f's[{S_C}:{S_C+3}]'; SX=f's[{S_X}:{S_X+3}]'; SD=f's[{S_DBG}:{S_DBG+3}]'

class A:
    def __init__(s): s.L=[]
    def __call__(s,x):
        for l in x.strip('\n').split('\n'): s.L.append('    '+l.strip())
    def label(s,x): s.L.append(x+':')
    def nop(s,n):
        while n>0:
            k=min(n,16); s('s_nop %d'%(k-1)); n-=k
a=A()
def srd(d,lo,hi,nbytes):
    a(f's_mov_b32 s{d}, s{lo}\ns_mov_b32 s{d+1}, s{hi}\ns_mov_b32 s{d+2}, {nbytes}\ns_mov_b32 s{d+3}, 0x20000')
def srdp(d,i,n): srd(d,P+2*i,P+2*i+1,n)
def dpp(op,d,s0,s1,ctl): a(f'{op}_dpp v{d}, v{s0}, v{s1} {ctl} row_mask:0xf bank_mask:0xf')
def wave_allreduce(op, regs, tmps):
    for ctl in ['row_ror:8','row_ror:4','row_ror:2','row_ror:1']:
        a.nop(2 if len(regs)<3 else 1)
        for r in regs: dpp(op,r,r,r,ctl)
    for sw in ['v_permlane16_swap_b32','v_permlane32_swap_b32']:
        for r,t in zip(regs,tmps): a(f'v_mov_b32 v{t}, v{r}')
        a.nop(2)
        for r,t in zip(regs,tmps): a(f'{sw} v{r}, v{t}')
        a.nop(1)
        for r,t in zip(regs,tmps): a(f'{op} v{r}, v{r}, v{t}')
def bf16r(d,s_): a(f'v_cvt_pk_bf16_f32 v{d}, v{s_}, v{s_}\nv_lshlrev_b32 v{d}, 16, v{d}')
def bf16r2(d0,d1,s0,s1,t): a(f'v_cvt_pk_bf16_f32 v{t}, v{s0}, v{s1}\nv_lshlrev_b32 v{d0}, 16, v{t}\nv_and_b32 v{d1}, 0xffff0000, v{t}')
def halve8(acc):
    a.nop(2)
    for i in range(4): a(f'v_permlane32_swap_b32 v{acc[i]}, v{acc[i+4]}')
    a.nop(1)
    for i in range(4): a(f'v_add_f32 v{acc[i]}, v{acc[i]}, v{acc[i+4]}')
    a.nop(1)
    for i in range(2): a(f'v_permlane16_swap_b32 v{acc[i]}, v{acc[i+2]}')
    a.nop(1)
    for i in range(2): a(f'v_add_f32 v{acc[i]}, v{acc[i]}, v{acc[i+2]}')
    return acc[0],acc[1]
def halve16(acc, rors):
    a.nop(2)
    for i in range(8): a(f'v_permlane32_swap_b32 v{acc[i]}, v{acc[i+8]}')
    a.nop(1)
    for i in range(8): a(f'v_add_f32 v{acc[i]}, v{acc[i]}, v{acc[i+8]}')
    a.nop(1)
    for i in range(4): a(f'v_permlane16_swap_b32 v{acc[i]}, v{acc[i+4]}')
    a.nop(1)
    for i in range(4): a(f'v_add_f32 v{acc[i]}, v{acc[i]}, v{acc[i+4]}')
    for ctl in rors:
        for i in range(4): dpp('v_add_f32',acc[i],acc[i],acc[i],ctl)
    return acc[:4]
def mul8(acc,w,sc,first,t0=42,t1=43):
    for k in range(4):
        a(f'v_lshlrev_b32 v{t0}, 16, v{w+k}\nv_and_b32 v{t1}, 0xffff0000, v{w+k}')
        op='v_mul_f32' if first else 'v_fmac_f32'
        a(f'{op} v{acc[2*k]}, v{sc}, v{t0}\n{op} v{acc[2*k+1]}, v{sc}, v{t1}')
def mulN(acc,w,n,sc,t0=42,t1=43):
    for k in range(n):
        a(f'v_lshlrev_b32 v{t0}, 16, v{w+k}\nv_and_b32 v{t1}, 0xffff0000, v{w+k}\nv_mul_f32 v{acc[2*k]}, v{sc}, v{t0}\nv_mul_f32 v{acc[2*k+1]}, v{sc}, v{t1}')
def ln_fin(vm,vs,t0):
    bf16r2(vm,vs,vm,vs,t0)
    a(f'v_add_f32 v{vs}, 0x3727c5ac, v{vs}')
    bf16r(vs,vs)
    a(f'v_sqrt_f32 v{vs}, v{vs}\ns_nop 0')
    bf16r(vs,vs)
def ln_stats(x8, vm, vs, t0):
    a(f'v_add_f32 v{vm}, v{x8[0]}, v{x8[1]}')
    for k in range(2,8): a(f'v_add_f32 v{vm}, v{vm}, v{x8[k]}')
    wave_allreduce('v_add_f32',[vm],[t0])
    a(f'v_mul_f32 v{vm}, 0x3b000000, v{vm}\nv_mov_b32 v{vs}, 0')
    for k in range(8): a(f'v_sub_f32 v{t0}, v{x8[k]}, v{vm}\nv_fmac_f32 v{vs}, v{t0}, v{t0}')
    wave_allreduce('v_add_f32',[vs],[t0])
    a(f'v_mul_f32 v{vs}, 0x3b000000, v{vs}')
    ln_fin(vm,vs,t0)
def div1(d,n,den,t0,t1):
    a(f'''v_rcp_f32 v{t0}, v{den}
    s_nop 0
    v_mul_f32 v{t1}, v{n}, v{t0}
    v_fma_f32 v{d}, -v{t1}, v{den}, v{n}
    v_fma_f32 v{d}, v{d}, v{t0}, v{t1}''')
def unpack8(dst, src):
    for k in range(4): a(f'v_and_b32 v{dst[2*k+1]}, 0xffff0000, v{src+k}\nv_lshlrev_b32 v{dst[2*k]}, 16, v{src+k}')
def sum8r(b):
    a(f'''v_add_f32 v{b}, v{b}, v{b+1}
    v_add_f32 v{b+2}, v{b+2}, v{b+3}
    v_add_f32 v{b+4}, v{b+4}, v{b+5}
    v_add_f32 v{b+6}, v{b+6}, v{b+7}
    v_add_f32 v{b}, v{b}, v{b+2}
    v_add_f32 v{b+4}, v{b+4}, v{b+6}
    v_add_f32 v{b}, v{b}, v{b+4}''')
def sum8_lds(off,stride,dst,addr):
    for w in range(8): a(f'ds_read_b32 v{8+w}, v{addr} offset:{off+w*stride}')
    a('s_waitcnt lgkmcnt(0)')
    sum8r(8)
    if dst!=8: a(f'v_mov_b32 v{dst}, v8')
lid=[0]
def L(p):
    lid[0]+=1; return f'{p}{lid[0]}'
def nstamp(nm):
    if TS and nm in NST:
        i=1+NST.index(nm)
        a(f's_memrealtime s[100:101]\ns_waitcnt lgkmcnt(0)\nv_mov_b32 v{TSV+2*i}, s100\nv_mov_b32 v{TSV+1+2*i}, s101')
def tsend():
    if not TS: return
    a(f'''s_waitcnt vmcnt(0)
    s_memrealtime s[100:101]
    s_mov_b64 exec, -1
    v_cmp_eq_u32 vcc, 0, v0
    s_and_saveexec_b64 s[36:37], vcc
    s_waitcnt lgkmcnt(0)
    v_mov_b32 v5, 0
    s_lshl_b32 s3, s2, 6
    s_add_u32 s3, s3, {TSOFF}
    v_mov_b32 v0, s100
    v_mov_b32 v1, s101
    v_mov_b32 v2, 0
    v_mov_b32 v3, 0
    buffer_store_dwordx4 v[{TSV}:{TSV+3}], v5, s[4:7], s3 offen
    buffer_store_dwordx4 v[{TSV+4}:{TSV+7}], v5, s[4:7], s3 offen offset:16
    buffer_store_dwordx4 v[{TSV+8}:{TSV+11}], v5, s[4:7], s3 offen offset:32
    buffer_store_dwordx4 v[0:3], v5, s[4:7], s3 offen offset:48''')
def gather(loads, regs):
    l0=L('GA'); l1=L('GD')
    a('s_mov_b32 s38, 0')
    a.label(l0)
    for x in loads: a(x+' '+SC1)
    a('s_add_u32 s38, s38, 1\ns_waitcnt vmcnt(0)')
    r=list(regs)
    if len(r)==1: a(f'v_mov_b32 v70, v{r[0]}'); i=1
    elif len(r)==2: a(f'v_max_u32 v70, v{r[0]}, v{r[1]}'); i=2
    else: a(f'v_max3_u32 v70, v{r[0]}, v{r[1]}, v{r[2]}'); i=3
    while i<len(r):
        if i+1<len(r): a(f'v_max3_u32 v70, v70, v{r[i]}, v{r[i+1]}'); i+=2
        else: a(f'v_max_u32 v70, v70, v{r[i]}'); i+=1
    a(f'''v_cmp_eq_u32 vcc, -1, v70
    s_cmp_gt_u32 s38, 0x40000
    s_cbranch_scc1 {l1}
    s_nop 2
    s_cmp_eq_u64 vcc, 0
    s_cbranch_scc1 {l1}
    s_sleep {SLP}
    s_branch {l0}''')
    a.label(l1)
def poll_dbg(word,val):
    l0=L('WA'); l1=L('WD')
    a('s_mov_b32 s38, 0\nv_mov_b32 v71, 0')
    a.label(l0)
    a(f'''buffer_load_dword v70, v71, {SD}, 0 offen offset:{4*word} {SC1}
    s_add_u32 s38, s38, 1
    s_waitcnt vmcnt(0)
    v_readfirstlane_b32 s3, v70
    s_cmp_gt_u32 s38, 0x40000
    s_cbranch_scc1 {l1}
    s_cmp_ge_u32 s3, {val}
    s_cbranch_scc1 {l1}
    s_sleep {DSL}
    s_branch {l0}''')
    a.label(l1)
def red8_w(acc, off):
    c0,c1=halve8(acc)
    a.nop(2)
    dpp('v_add_f32',c0,c0,c0,'row_ror:8'); dpp('v_add_f32',c1,c1,c1,'row_ror:8')
    a(f'ds_write_b64 v{VRED}, v[{c0}:{c1}] offset:{off}\ns_waitcnt lgkmcnt(0)')
BAR='s_barrier'

a.L.append(f'.globl {KN}\n.p2align 8\n.type {KN},@function\n{KN}:')
if TS:
    a(f's_memrealtime s[100:101]\ns_waitcnt lgkmcnt(0)\nv_mov_b32 v{TSV}, s100\nv_mov_b32 v{TSV+1}, s101')
    for i in range(TSV+2,TSV+12): a(f'v_mov_b32 v{i}, 0')
DBGT=os.environ.get('DBGT','0')=='1'
if DBGT: a('s_memrealtime s[72:73]')
a(f'''s_cmp_ge_u32 s2, 256
s_cbranch_scc1 K_END
s_load_dwordx16 s[40:55], s[0:1], 0
s_load_dwordx16 s[56:71], s[0:1], 64
v_lshrrev_b32 v1, 6, v0
v_lshrrev_b32 v4, 3, v0
v_readfirstlane_b32 s39, v1
v_and_b32 v5, 7, v0
s_lshr_b32 s30, s2, 3
s_and_b32 s31, s2, 7
s_and_b32 s32, s2, 3
s_lshr_b32 s33, s2, 2
s_cmp_ge_u32 s39, 8
s_cbranch_scc1 AUX''')
a(f'''s_lshl_b32 s3, s32, 7
v_add_u32 v6, s3, v4
v_lshlrev_b32 v7, 1, v6
v_mul_u32_u24 v8, 0x1800, v6
v_lshl_add_u32 v8, v5, 4, v8
s_lshl_b32 s3, s33, 7
v_add_u32 v8, s3, v8
s_mov_b32 s34, 393216
v_lshlrev_b32 v9, 13, v6
v_lshl_add_u32 v9, v5, 4, v9
s_lshl_b32 s3, s30, 8
s_bfe_u32 s28, s2, 0x10002
s_lshl_b32 s28, s28, 7
s_add_u32 s3, s3, s28
v_add_u32 v9, s3, v9
s_mov_b32 s35, 0x80000
v_lshlrev_b32 v10, 13, v4
v_lshl_add_u32 v10, v5, 5, v10
s_lshl_b32 s3, s31, 19
s_lshl_b32 s28, s30, 8
s_add_u32 s74, s3, s28
v_lshlrev_b32 v12, 1, v0
s_lshl_b32 s3, s39, 8
v_lshlrev_b32 v{VRED}, 5, v5
v_add_u32 v{VRED}, s3, v{VRED}
v_bfe_u32 v2, v0, 4, 1
v_lshl_add_u32 v{VRED}, v2, 3, v{VRED}
v_bfe_u32 v2, v0, 5, 1
v_lshl_add_u32 v{VRED}, v2, 4, v{VRED}
s_and_b32 s77, s2, 7
s_lshr_b32 s3, s2, 5
s_lshl_b32 s3, s3, 3
s_or_b32 s77, s77, s3
s_bfe_u32 s78, s2, 0x20003
v_and_b32 v1, 63, v0
v_lshrrev_b32 v2, 3, v1
v_and_b32 v3, 7, v1
v_xor_b32 v3, v3, v2
v_lshlrev_b32 v3, 4, v3
v_lshl_add_u32 v{VDMA}, v2, 10, v3
s_lshl_b32 s3, s39, 7
s_lshl_b32 s29, s77, 16
s_add_u32 s29, s29, s3
s_mul_i32 s79, s39, {REG}
s_add_u32 s79, s79, {RB}
s_sub_u32 s76, s2, {G0}
s_waitcnt lgkmcnt(0)''')
srdp(S_WS,15,WSBYTES); srdp(S_X,0,1024); srdp(S_A,12,3145728); srdp(S_B,11,1024)
a('s_cmp_lt_u32 s2, 192\ns_cbranch_scc1 C_MLD')
srdp(S_DBG,14,256)
a(f'''s_sub_u32 s28, s2, 192
v_lshlrev_b32 v1, 4, v0
v_mov_b32 v16, -1
v_mov_b32 v17, -1
v_mov_b32 v18, -1
v_mov_b32 v19, -1
v_mov_b32 v20, 1
v_mov_b32 v21, 0
s_lshl_b32 s3, s28, 13
s_cmp_ge_u32 s28, 6
s_cbranch_scc1 C_INIT2
buffer_store_dwordx4 v[16:19], v1, {WS}, s3 offen {SC1}
s_waitcnt vmcnt(0)
s_barrier
v_cmp_eq_u32 vcc, 0, v0
s_and_saveexec_b64 s[36:37], vcc
buffer_atomic_add v20, v21, {SD}, 0 offen offset:128
s_mov_b64 exec, s[36:37]''')
a.label('C_INIT2')
a(f'''s_add_u32 s3, s3, 0x10000
buffer_store_dwordx4 v[16:19], v1, {WS}, s3 offen {SC1}
s_waitcnt vmcnt(0)
s_barrier
v_cmp_eq_u32 vcc, 0, v0
s_and_saveexec_b64 s[36:37], vcc
buffer_atomic_add v20, v21, {SD}, 0 offen
s_mov_b64 exec, s[36:37]
s_branch C_NOM''')
a.label('C_MLD')
a(f'''buffer_load_ushort v24, v7, {SB}, 0 offen
buffer_load_ushort v25, v7, {SB}, 0 offen offset:128
buffer_load_dwordx4 v[32:35], v8, {SA}, 0 offen
buffer_load_dwordx4 v[36:39], v8, {SA}, s34 offen''')
a.label('C_NOM')
srdp(S_A,2,4194304); srdp(S_B,3,4194304); srdp(S_C,1,4194304)
a(f'''buffer_load_dwordx4 v[{WQ}:{WQ+3}], v9, {SA}, 0 offen
buffer_load_dwordx4 v[{WQ+4}:{WQ+7}], v9, {SA}, s35 offen
buffer_load_dwordx4 v[{WUK}:{WUK+3}], v10, {SB}, s74 offen
buffer_load_dwordx4 v[{WUK+4}:{WUK+7}], v10, {SB}, s74 offen offset:16
buffer_load_ushort v{XE}, v12, {SX}, 0 offen''')
srdp(S_A,10,1024)
a(f'buffer_load_ushort v{B2}, v12, {SA}, 0 offen')
def dma(lo,hi):
    for i in range(lo,hi):
        a(f's_add_u32 m0, s79, {1024*i}\ns_add_u32 s3, s29, {8192*i}\nbuffer_load_dwordx4 v{VDMA}, {SC}, s3 offen lds')
def stage_uv():
    srdp(S_A,4,4194304); srdp(S_B,5,4194304)
    a(f'''v_lshrrev_b32 v4, 3, v0
    v_and_b32 v5, 7, v0
    v_lshlrev_b32 v10, 13, v4
    v_lshl_add_u32 v10, v5, 5, v10
    buffer_load_dwordx4 v[{WUV}:{WUV+3}], v10, {SA}, s74 offen
    buffer_load_dwordx4 v[{WUV+4}:{WUV+7}], v10, {SA}, s74 offen offset:16''')
def stage_o():
    a(f'''s_lshr_b32 s3, s2, 5
    s_lshl_b32 s3, s3, 19
    s_and_b32 s28, s2, 31
    s_lshl_b32 s28, s28, 5
    s_add_u32 s3, s3, s28
    v_lshrrev_b32 v11, 1, v0
    v_lshlrev_b32 v11, 10, v11
    v_and_b32 v15, 1, v0
    v_lshl_add_u32 v11, v15, 4, v11
    s_add_u32 s28, s3, 0x40000
    buffer_load_dwordx4 v[{WO}:{WO+3}], v11, {SB}, s3 offen
    buffer_load_dwordx4 v[{WO+4}:{WO+7}], v11, {SB}, s28 offen''')
def gload():
    srdp(S_A,7,512*2752); srdp(S_B,9,1376*1024)
    a(f'''v_lshrrev_b32 v6, 2, v0
    v_mul_u32_u24 v6, 2752, v6
    v_and_b32 v15, 3, v0
    v_lshl_add_u32 v6, v15, 4, v6
    s_lshl_b32 s28, s76, 6''')
    for q in range(4):
        a(f's_add_u32 s3, s28, {2752*128*q}\nbuffer_load_dwordx4 v[{W1+4*q}:{W1+4*q+3}], v6, {SA}, s3 offen')
    srdp(S_A,8,2752)
    a(f'''v_and_b32 v6, 31, v0
    v_lshlrev_b32 v6, 1, v6
    buffer_load_ushort v{B1}, v6, {SA}, s28 offen
    v_and_b32 v6, 255, v0
    v_lshlrev_b32 v6, 2, v6
    s_lshl_b32 s3, s76, 15
    s_lshr_b32 s28, s39, 2
    s_lshl_b32 s28, s28, 14
    s_add_u32 s3, s3, s28''')
    for d in range(16):
        if d%4==0 and d>0: a('s_add_u32 s3, s3, 4096')
        a(f'buffer_load_dword v{W2+d}, v6, {SB}, s3 offen offset:{1024*(d%4)}')
ND=8 if DMA0 else 0
if DMA0: dma(0,8)
a(f's_cmp_lt_u32 s2, {G0}\ns_cbranch_scc1 C_NOG')
gload()
a(f's_waitcnt vmcnt({23+ND})')
a.label('C_NOG')
a('s_cmp_ge_u32 s2, 192\ns_cbranch_scc1 C_M_DONE\ns_waitcnt vmcnt(%d)'%(8+ND))
for i in range(2): a(f'v_lshlrev_b32 v{24+i}, 16, v{24+i}\nv_mul_f32 v{28+i}, 0xbfb8aa3b, v{24+i}')
for i in range(2): a(f'v_exp_f32 v{28+i}, v{28+i}')
a('s_nop 0')
for i in range(2): a(f'v_add_f32 v{28+i}, 1.0, v{28+i}')
for i in range(2): a(f'v_rcp_f32 v{28+i}, v{28+i}')
a('s_nop 0')
for i in range(2): a(f'v_mul_f32 v{24+i}, v{24+i}, v{28+i}')
bf16r2(24,25,24,25,28)
acc=list(range(48,56))
a(f's_waitcnt vmcnt({6+ND})')
mul8(acc,32,24,True); mul8(acc,36,25,False)
red8_w(acc,0)
a.label('C_M_DONE')
nstamp('m_pre')
a(BAR)
nstamp('m_done')
if not DMA0:
    a(BAR)
    dma(0,4)
a(f's_cmp_ge_u32 s2, {G0}\ns_cbranch_scc1 CW1\ns_waitcnt vmcnt({12 if DMA0 else 8})')
a.label('CW1')
a('v_lshlrev_b32 v3, 2, v4')
a(BAR)
nstamp('a_gath')
a('ds_read_b32 v40, v3 offset:4096\nds_read_b32 v41, v3 offset:4352\ns_waitcnt lgkmcnt(0)')
mul8(acc,WQ,40,True); mul8(acc,WQ+4,41,False)
red8_w(acc,2048)
a(BAR)
nstamp('a_done')
if not DMA0:
    a(BAR)
    dma(4,8)
a(f's_cmp_ge_u32 s2, {G0}\ns_cbranch_scc1 CW2\ns_waitcnt vmcnt(10)')
a.label('CW2')
a('v_lshlrev_b32 v1, 6, v5')
a(BAR)
nstamp('b_gath')
for q in range(4): a(f'ds_read_b128 v[{16+4*q}:{19+4*q}], v1 offset:{4608+16*q}')
a('s_waitcnt lgkmcnt(0)')
for k in range(8):
    a(f'v_lshlrev_b32 v42, 16, v{WUK+k}\nv_and_b32 v43, 0xffff0000, v{WUK+k}')
    if k==0: a('v_mul_f32 v48, v16, v42\nv_mul_f32 v49, v17, v43')
    else: a(f'v_fmac_f32 v48, v{16+2*k}, v42\nv_fmac_f32 v49, v{17+2*k}, v43')
a('v_add_f32 v48, v48, v49')
for ctl in ['quad_perm:[1,0,3,2]','quad_perm:[2,3,0,1]','row_half_mirror']:
    a.nop(2); dpp('v_add_f32',48,48,48,ctl)
a(f'''v_cvt_pk_bf16_f32 v49, v48, v48
v_and_b32 v50, 0xffff0000, v49
v_sub_f32 v48, v48, v50
v_cvt_pk_bf16_f32 v48, v48, v48
v_and_b32 v49, 0xffff, v49
v_lshl_or_b32 v48, v48, 16, v49
v_lshlrev_b32 v1, 2, v4
s_lshl_b32 s3, s2, 8
s_add_u32 s3, s3, {QA}
v_cmp_eq_u32 vcc, 0, v5
s_and_saveexec_b64 s[36:37], vcc
buffer_store_dword v48, v1, {WS}, s3 offen {SC1}
s_mov_b64 exec, s[36:37]''')
a(BAR)
nstamp('b_done')
if not UVC: stage_uv()
a(f'''v_and_b32 v1, 63, v0
v_lshrrev_b32 v2, 4, v1
v_and_b32 v3, 15, v1
v_min_u32 v6, 7, v3
v_lshlrev_b32 v6, 11, v6
v_lshl_add_u32 v6, v2, 5, v6
s_lshl_b32 s24, s78, 14
s_lshl_b32 s26, s39, 8
s_add_u32 s24, s24, s26
s_add_u32 s24, s24, {QA}
v_and_b32 v7, 7, v3
v_xor_b32 v7, v7, v2
v_lshlrev_b32 v7, 4, v7
v_lshl_add_u32 v7, v3, 7, v7
v_add_u32 v7, s79, v7
v_xor_b32 v8, 64, v7
v_and_b32 v9, 7, v3
v_lshl_add_u32 v11, v2, 3, v9
v_lshlrev_b32 v11, 4, v11
s_lshl_b32 s3, s39, 11
v_add_u32 v12, s3, v11
s_mov_b32 s25, 0x05040100
s_mov_b32 s26, 0x07060302''')
D1=56
for r in range(16): a(f'v_mov_b32 v{D1+r}, 0')
gather([f'buffer_load_dwordx4 v[{16+4*q}:{19+4*q}], v6, {WS}, s24 offen offset:{(q>>1)*128+(q&1)*16}' for q in range(4)], range(16,32))
nstamp('c_gath')
a('v_mov_b32 v70, 0\nv_mov_b32 v71, 0\nv_mov_b32 v14, v11')
if UVC: stage_uv(); stage_o()
a('v_mov_b32 v11, v14')
for s_ in range(2):
    for k in range(4):
        x0=16+8*s_+2*k
        a(f'v_perm_b32 v{32+4*s_+k}, v{x0+1}, v{x0}, s25\nv_perm_b32 v{40+4*s_+k}, v{x0+1}, v{x0}, s26')
for T in range(4):
    base=16+8*(T&1)
    a(f'ds_read_b128 v[{base}:{base+3}], v7 offset:{2048*T}\nds_read_b128 v[{base+4}:{base+7}], v8 offset:{2048*T}')
    for s_ in range(2):
        a(f's_waitcnt lgkmcnt({1-s_})')
        a(f'v_mfma_f32_16x16x32_bf16 v[{D1+4*T}:{D1+4*T+3}], v[{base+4*s_}:{base+4*s_+3}], v[{32+4*s_}:{35+4*s_}], v[{D1+4*T}:{D1+4*T+3}]')
        a(f'v_mfma_f32_16x16x32_bf16 v[{D1+4*T}:{D1+4*T+3}], v[{base+4*s_}:{base+4*s_+3}], v[{40+4*s_}:{43+4*s_}], v[{D1+4*T}:{D1+4*T+3}]')
a('v_cmp_gt_u32 vcc, 8, v3\ns_and_saveexec_b64 s[36:37], vcc')
a.nop(7)
for T in range(4): a(f'ds_write_b128 v12, v[{D1+4*T}:{D1+4*T+3}] offset:{XCH+512*T}')
a('s_mov_b64 exec, s[36:37]\ns_waitcnt lgkmcnt(0)')
a(BAR)
nstamp('c_g1')
P0=16
for w in range(8):
    dst=P0 if w==0 else 32+16*((w-1)%2)
    for T in range(4): a(f'ds_read_b128 v[{dst+4*T}:{dst+4*T+3}], v11 offset:{XCH+(w*4+T)*512}')
    if w>=2:
        src=32+16*((w-2)%2)
        a('s_waitcnt lgkmcnt(4)')
        for r in range(16): a(f'v_add_f32 v{P0+r}, v{P0+r}, v{src+r}')
a('s_waitcnt lgkmcnt(0)')
for r in range(16): a(f'v_add_f32 v{P0+r}, v{P0+r}, v{32+r}')
for r in range(0,16,2):
    bf16r2(P0+r,P0+r+1,P0+r,P0+r+1,12)
    a(f'v_mul_f32 v{P0+r}, 0x3db504f3, v{P0+r}\nv_mul_f32 v{P0+r+1}, 0x3db504f3, v{P0+r+1}')
    bf16r2(P0+r,P0+r+1,P0+r,P0+r+1,12)
a(f'v_max_f32 v32, v{P0}, v{P0+1}')
for r in range(2,16,2): a(f'v_max3_f32 v32, v32, v{P0+r}, v{P0+r+1}')
for sw in ['v_permlane16_swap_b32','v_permlane32_swap_b32']:
    a(f'v_mov_b32 v33, v32\ns_nop 1\n{sw} v32, v33\ns_nop 1\nv_max_f32 v32, v32, v33')
a(f's_mov_b32 s3, {LOG2E}\nv_mul_f32 v33, s3, v32')
for r in range(16): a(f'v_fma_f32 v{P0+r}, v{P0+r}, s3, -v33')
for r in range(16): a(f'v_exp_f32 v{P0+r}, v{P0+r}')
a(f'''v_lshrrev_b32 v7, 2, v3
v_lshl_add_u32 v7, v2, 2, v7
v_and_b32 v8, 7, v7
v_bfe_u32 v9, v1, 1, 1
v_xor_b32 v8, v8, v9
v_lshlrev_b32 v8, 4, v8
v_lshl_add_u32 v8, v7, 7, v8
v_and_b32 v9, 1, v1
v_lshl_add_u32 v8, v9, 3, v8
v_add_u32 v8, s79, v8''')
for kk in range(2):
    for hh in range(2):
        T=2*kk+hh
        a(f'v_cvt_pk_bf16_f32 v{40+4*kk+2*hh}, v{P0+4*T}, v{P0+4*T+1}\nv_cvt_pk_bf16_f32 v{41+4*kk+2*hh}, v{P0+4*T+2}, v{P0+4*T+3}')
nstamp('c_sm')
D2=56
for r in range(16): a(f'v_mov_b32 v{D2+r}, 0')
FRG=[72,76,80,84,48,52,16,20]
def rdt(t):
    a(f'v_xor_b32 v13, {t<<5}, v8')
    for kk in range(2):
        f=FRG[t*2+kk]
        a(f'ds_read_b64_tr_b16 v[{f}:{f+1}], v13 offset:{2048*(2*kk)}\nds_read_b64_tr_b16 v[{f+2}:{f+3}], v13 offset:{2048*(2*kk+1)}')
rdt(0); rdt(1); rdt(2)
a(f'v_add_f32 v34, v{P0}, v{P0+1}')
for r in range(2,16): a(f'v_add_f32 v34, v34, v{P0+r}')
rdt(3)
for sw in ['v_permlane16_swap_b32','v_permlane32_swap_b32']:
    a(f'v_mov_b32 v33, v34\ns_nop 1\n{sw} v34, v33\ns_nop 1\nv_add_f32 v34, v34, v33')
for t in range(4):
    for kk in range(2):
        f=FRG[t*2+kk]
        a(f's_waitcnt lgkmcnt({14-2*(t*2+kk)})')
        a(f'v_mfma_f32_16x16x32_bf16 v[{D2+4*t}:{D2+4*t+3}], v[{f}:{f+3}], v[{40+4*kk}:{43+4*kk}], v[{D2+4*t}:{D2+4*t+3}]')
a(f'''v_lshlrev_b32 v10, 7, v3
v_lshl_add_u32 v10, v2, 3, v10
v_add_u32 v10, s79, v10
v_lshlrev_b32 v11, 4, v1
v_add_u32 v11, s79, v11
v_lshrrev_b32 v12, 3, v1
v_lshlrev_b32 v12, 16, v12
v_and_b32 v13, 7, v1
v_lshl_add_u32 v12, v13, 4, v12
s_lshl_b32 s24, s78, 19
s_lshl_b32 s26, s77, 10
s_add_u32 s24, s24, s26
s_lshl_b32 s26, s39, 7
s_add_u32 s24, s24, s26
s_add_u32 s24, s24, {PART}
s_lshl_b32 s25, s78, 12
s_lshl_b32 s26, s77, 3
s_add_u32 s25, s25, s26
s_add_u32 s25, s25, {STAT}
v_lshlrev_b32 v9, 9, v3
v_mov_b32 v35, v34
v_mov_b32 v34, v32
v_cmp_gt_u32 vcc, 8, v3
s_and_saveexec_b64 s[36:37], vcc''')
for t in range(4):
    a(f'v_cvt_pk_bf16_f32 v{16+2*t}, v{D2+4*t}, v{D2+4*t+1}\nv_cvt_pk_bf16_f32 v{17+2*t}, v{D2+4*t+2}, v{D2+4*t+3}')
    a(f'ds_write_b64 v10, v[{16+2*t}:{17+2*t}] offset:{32*t}')
a(f'''s_mov_b64 exec, s[36:37]
s_waitcnt lgkmcnt(0)
ds_read_b128 v[16:19], v11
s_waitcnt lgkmcnt(0)
buffer_store_dwordx4 v[16:19], v12, {WS}, s24 offen {SC1}
s_waitcnt vmcnt(0)''')
a(BAR)
a(f'''v_cmp_gt_u32 vcc, 8, v0
s_and_saveexec_b64 s[36:37], vcc
buffer_store_dwordx2 v[34:35], v9, {WS}, s25 offen {SC1}
s_mov_b64 exec, s[36:37]''')
nstamp('c_done')
if not UVC: stage_o()
a(f'''v_lshrrev_b32 v4, 3, v0
v_and_b32 v5, 7, v0
v_lshlrev_b32 v6, 10, v4
v_lshl_add_u32 v6, v5, 4, v6
s_lshl_b32 s24, s30, 16
s_lshl_b32 s26, s31, 7
s_add_u32 s24, s24, s26
s_add_u32 s24, s24, {PART}
v_and_b32 v1, 63, v0
v_lshlrev_b32 v7, 3, v1
s_lshl_b32 s25, s30, 9
s_add_u32 s25, s25, {STAT}''')
gather([f'buffer_load_dwordx2 v[40:41], v7, {WS}, s25 offen'], [40,41])
a(f'buffer_load_dwordx4 v[16:19], v6, {WS}, s24 offen {SC1}')
nstamp('d_gath')
a('v_mov_b32 v42, v40')
wave_allreduce('v_max_f32',[42],[43])
a(f'''v_sub_f32 v40, v40, v42
v_mul_f32 v40, {LOG2E}, v40
v_exp_f32 v40, v40
s_nop 0
v_mul_f32 v41, v41, v40''')
wave_allreduce('v_add_f32',[41],[43])
a('''v_rcp_f32 v41, v41
v_lshlrev_b32 v42, 2, v4
v_mul_f32 v40, v40, v41
s_nop 0
ds_bpermute_b32 v40, v42, v40
s_waitcnt vmcnt(0) lgkmcnt(0)''')
mul8(acc,16,40,True)
red8_w(acc,0)
a('v_lshlrev_b32 v3, 2, v4')
a(BAR)
sum8_lds(0,256,40,3)
acc16=list(range(16,32))
mulN(acc16,WUV,8,40)
halve16(acc16,['row_ror:8'])
a(f'''s_lshl_b32 s3, s39, 9
v_lshlrev_b32 v1, 6, v5
v_add_u32 v1, s3, v1
v_bfe_u32 v2, v0, 4, 2
v_lshl_add_u32 v1, v2, 4, v1
ds_write_b128 v1, v[16:19] offset:4096
s_waitcnt lgkmcnt(0)''')
a(BAR)
nstamp('d_done')
a(f'''v_lshrrev_b32 v1, 7, v0
v_lshlrev_b32 v1, 12, v1
v_and_b32 v2, 127, v0
v_lshl_add_u32 v1, v2, 2, v1
s_lshr_b32 s3, s2, 5
s_lshl_b32 s3, s3, 14
s_add_u32 s3, s3, {CP}''')
gather([f'buffer_load_dword v{16+j}, v1, {WS}, s3 offen offset:{512*j}' for j in range(8)], range(16,24))
nstamp('e_gath')
sum8r(16)
bf16r(16,16)
a(f'''v_lshlrev_b32 v1, 2, v0
ds_write_b32 v1, v16 offset:8192
v_lshrrev_b32 v3, 1, v0
v_lshlrev_b32 v3, 2, v3
s_waitcnt lgkmcnt(0)''')
a(BAR)
a('ds_read_b32 v40, v3 offset:8192\nds_read_b32 v41, v3 offset:9216\ns_waitcnt lgkmcnt(0)')
mul8(acc,WO,40,True); mul8(acc,WO+4,41,False)
c0,c1=halve8(acc)
for ctl in ['row_ror:8','row_ror:4','row_ror:2']:
    a.nop(2); dpp('v_add_f32',c0,c0,c0,ctl); dpp('v_add_f32',c1,c1,c1,ctl)
a(f'''s_lshl_b32 s3, s39, 6
v_and_b32 v5, 1, v0
v_lshlrev_b32 v3, 5, v5
v_add_u32 v3, s3, v3
v_bfe_u32 v5, v0, 4, 1
v_lshl_add_u32 v3, v5, 3, v3
v_bfe_u32 v5, v0, 5, 1
v_lshl_add_u32 v3, v5, 4, v3
ds_write_b64 v3, v[{c0}:{c1}] offset:12288
s_waitcnt lgkmcnt(0)''')
a(BAR)
nstamp('e_done')
a(f'''s_cmp_lt_u32 s2, {H0}
s_cbranch_scc1 K_TS
v_lshlrev_b32 v1, 4, v0
v_add_u32 v1, {MGL}, v1
ds_read_b128 v[{MG}:{MG+3}], v1
s_cmp_lt_u32 s2, {G0}
s_cbranch_scc1 H_GO''')
a(f'''v_lshlrev_b32 v1, 2, v0
s_mov_b32 s3, {OP}
s_add_u32 s24, s3, 4096
s_add_u32 s25, s3, 8192
s_add_u32 s26, s3, 12288''')
gather([f'buffer_load_dword v{16+k}, v1, {WS}, s{3 if k<2 else 23+k//2} offen offset:{2048*(k%2)}' for k in range(8)], range(16,24))
nstamp('g_gath')
sum8r(16)
bf16r(16,16)
a(f's_waitcnt lgkmcnt(0)\nv_mul_f32 v16, v16, v{MG}')
bf16r(16,16)
a(f'v_lshlrev_b32 v17, 16, v{XE}\nv_add_f32 v16, v16, v17')
bf16r(16,16)
a(f's_lshl_b32 s3, s39, 3\nv_mov_b32 v3, s3\nv_mov_b32 v2, 0')
def ln_wg(x,slot):
    a(f'v_mov_b32 v44, v{x}\nv_mul_f32 v45, v{x}, v{x}')
    wave_allreduce('v_add_f32',[44,45],[46,47])
    a(f'''ds_write_b64 v3, v[44:45] offset:{slot}
    s_waitcnt lgkmcnt(0)
    s_barrier
    ds_read_b128 v[20:23], v2 offset:{slot}
    ds_read_b128 v[24:27], v2 offset:{slot+16}
    ds_read_b128 v[28:31], v2 offset:{slot+32}
    ds_read_b128 v[32:35], v2 offset:{slot+48}
    s_waitcnt lgkmcnt(0)
    v_add_f32 v20, v20, v22
    v_add_f32 v21, v21, v23
    v_add_f32 v24, v24, v26
    v_add_f32 v25, v25, v27
    v_add_f32 v28, v28, v30
    v_add_f32 v29, v29, v31
    v_add_f32 v32, v32, v34
    v_add_f32 v33, v33, v35
    v_add_f32 v20, v20, v24
    v_add_f32 v21, v21, v25
    v_add_f32 v28, v28, v32
    v_add_f32 v29, v29, v33
    v_add_f32 v44, v20, v28
    v_add_f32 v45, v21, v29
    v_mul_f32 v44, 0x3b000000, v44
    v_mul_f32 v45, 0x3b000000, v45
    v_fma_f32 v45, -v44, v44, v45
    v_max_f32 v45, 0, v45''')
    ln_fin(44,45,46)
    a(f'v_sub_f32 v{x}, v{x}, v44')
    bf16r(x,x)
    div1(20,x,45,22,23)
    bf16r(x,20)
ln_wg(16,8192)
a(f'v_mul_f32 v16, v16, v{MG+2}')
bf16r(16,16)
a(f'v_add_f32 v16, v16, v{MG+1}')
bf16r(16,16)
ln_wg(16,8320)
nstamp('g_ln')
a(f'''v_lshlrev_b32 v1, 2, v0
ds_write_b32 v1, v16
v_lshrrev_b32 v3, 2, v0
v_lshlrev_b32 v3, 2, v3
s_waitcnt lgkmcnt(0)
s_barrier''')
for q in range(4): a(f'ds_read_b32 v{20+q}, v3 offset:{512*q}')
a('s_waitcnt lgkmcnt(0)')
for q in range(4): mul8(acc,W1+4*q,20+q,q==0)
c0,c1=halve8(acc)
for ctl in ['row_ror:8','row_ror:4']:
    a.nop(2); dpp('v_add_f32',c0,c0,c0,ctl); dpp('v_add_f32',c1,c1,c1,ctl)
a(f'''s_lshl_b32 s3, s39, 7
v_and_b32 v5, 3, v0
v_lshlrev_b32 v3, 5, v5
v_add_u32 v3, s3, v3
v_bfe_u32 v5, v0, 4, 1
v_lshl_add_u32 v3, v5, 3, v3
v_bfe_u32 v5, v0, 5, 1
v_lshl_add_u32 v3, v5, 4, v3
ds_write_b64 v3, v[{c0}:{c1}] offset:9216
s_lshr_b32 s28, s39, 2
s_lshl_b32 s28, s28, 4
v_add_u32 v3, s28, v0
v_and_b32 v3, 31, v3
v_lshlrev_b32 v3, 2, v3
ds_bpermute_b32 v45, v3, v{B1}
s_waitcnt lgkmcnt(0)
s_barrier''')
sum8_lds(9216,128,8,3)
bf16r(8,8)
a('v_lshlrev_b32 v45, 16, v45\nv_add_f32 v8, v8, v45')
bf16r(8,8)
a('''v_mul_f32 v9, v8, v8
v_mov_b32 v10, 0x3d372713
v_fma_f32 v9, v9, v10, 1.0
v_mul_f32 v9, v9, v8
v_mul_f32 v9, 0xc0135761, v9
v_exp_f32 v9, v9
s_nop 0
v_add_f32 v9, 1.0, v9
v_rcp_f32 v9, v9
s_nop 0
v_mul_f32 v8, v8, v9''')
bf16r(8,8)
a('s_nop 0')
for k in range(16): a(f'v_readlane_b32 s{80+k}, v8, {k}')
a('s_nop 1')
for d in range(16):
    a(f'v_lshlrev_b32 v44, 16, v{W2+d}\nv_and_b32 v45, 0xffff0000, v{W2+d}')
    op='v_mul_f32' if d==0 else 'v_fmac_f32'
    a(f'{op} v42, s{80+d}, v44\n{op} v43, s{80+d}, v45')
a(f'''v_and_b32 v1, 255, v0
v_lshlrev_b32 v1, 3, v1
s_cmp_lt_u32 s39, 4
s_cbranch_scc1 G_LO
ds_write_b64 v1, v[42:43] offset:10240
s_waitcnt lgkmcnt(0)
s_barrier
s_branch K_TS''')
a.label('G_LO')
a(f'''s_barrier
ds_read_b64 v[44:45], v1 offset:10240
s_lshl_b32 s3, s76, 11
s_add_u32 s3, s3, {O2P}
s_waitcnt lgkmcnt(0)
v_add_f32 v42, v42, v44
v_add_f32 v43, v43, v45
buffer_store_dwordx2 v[42:43], v1, {WS}, s3 offen {SC1}''')
nstamp('g_done')
a('s_branch K_TS')
a.label('H_GO')
a(f'''s_sub_u32 s28, s2, {H0}
v_lshrrev_b32 v4, 4, v0
v_and_b32 v5, 15, v0
v_lshlrev_b32 v1, 11, v4
v_lshl_add_u32 v1, v5, 4, v1
s_lshl_b32 s3, s28, 8
s_add_u32 s24, s3, {OP}
s_add_u32 s25, s3, {O2P}
s_add_u32 s26, s25, 65536''')
for r in list(range(16,20))+list(range(24,28)): a(f'v_mov_b32 v{r}, 0')
a('s_cmp_ge_u32 s39, 2\ns_cbranch_scc1 H_SK0')
gather([f'buffer_load_dwordx4 v[16:19], v1, {WS}, s24 offen'], range(16,20))
a.label('H_SK0')
def red4(regs,off):
    for sw in ['v_permlane16_swap_b32','v_permlane32_swap_b32']:
        for i,r in enumerate(regs): a(f'v_mov_b32 v{44+i}, v{r}')
        a.nop(1)
        for i,r in enumerate(regs): a(f'{sw} v{r}, v{44+i}')
        a.nop(1)
        for i,r in enumerate(regs): a(f'v_add_f32 v{r}, v{r}, v{44+i}')
    a(f's_lshl_b32 s3, s39, 8\nv_lshl_add_u32 v2, v5, 4, s3\nds_write_b128 v2, v[{regs[0]}:{regs[3]}] offset:{off}')
red4([16,17,18,19],0)
a(f'''v_lshlrev_b32 v6, 4, v0
s_waitcnt lgkmcnt(0)
v_mov_b32 v16, v{MG}
v_mov_b32 v17, v{MG+3}
v_lshlrev_b32 v18, 16, v{XE}
v_lshlrev_b32 v19, 16, v{B2}
ds_write_b128 v6, v[16:19] offset:4096
v_cmp_gt_u32 vcc, {NG5-32}, v4
s_and_saveexec_b64 s[34:35], vcc
s_cbranch_execz H_SK''')
gather([f'buffer_load_dwordx4 v[24:27], v1, {WS}, s26 offen'], range(24,28))
a.label('H_SK')
a('s_mov_b64 exec, s[34:35]')
gather([f'buffer_load_dwordx4 v[20:23], v1, {WS}, s25 offen'], range(20,24))
nstamp('h_gath')
for c_ in range(4): a(f'v_add_f32 v{20+c_}, v{20+c_}, v{24+c_}')
red4([20,21,22,23],2048)
a(f'''s_waitcnt lgkmcnt(0)
s_barrier
s_cmp_lg_u32 s39, 0
s_cbranch_scc1 K_TS
s_lshl_b32 s3, s28, 10
v_add_u32 v2, s3, v6
ds_read_b128 v[24:27], v2 offset:4096
v_lshlrev_b32 v1, 2, v0''')
sum8_lds(0,256,16,1)
sum8_lds(2048,256,17,1)
bf16r2(16,17,16,17,20)
a('v_mul_f32 v16, v16, v24\nv_add_f32 v17, v17, v27')
bf16r2(16,17,16,17,20)
a('v_add_f32 v16, v16, v26\nv_mul_f32 v17, v17, v25')
bf16r2(16,17,16,17,20)
srdp(S_A,13,1024)
a(f'''v_add_f32 v16, v16, v17
v_cvt_pk_bf16_f32 v16, v16, v16
v_lshlrev_b32 v1, 1, v0
s_lshl_b32 s3, s28, 7
buffer_store_short v16, v1, {SA}, s3 offen''')
if DBGT:
    srdp(S_DBG,14,256)
    a(f'''s_memrealtime s[100:101]
    s_waitcnt lgkmcnt(0)
    s_sub_u32 s100, s100, s72
    v_mov_b32 v2, s100
    s_lshl_b32 s3, s28, 2
    v_mov_b32 v3, 0
    v_cmp_eq_u32 vcc, 0, v0
    s_and_saveexec_b64 s[36:37], vcc
    buffer_store_dword v2, v3, {SD}, s3 offen offset:16''')
a.label('K_TS')
tsend(); a('s_endpgm')
a.label('AUX')
a(f'''v_subrev_u32 v0, 512, v0
v_and_b32 v11, 63, v0
v_lshlrev_b32 v11, 4, v11
s_lshl_b32 s3, s32, 8
v_lshl_add_u32 v6, v0, 1, s3
s_waitcnt lgkmcnt(0)''')
srdp(S_WS,15,WSBYTES); srdp(S_DBG,14,256); srdp(S_X,0,1024)
a(f'''buffer_load_dwordx4 v[56:59], v11, {SX}, 0 offen
buffer_load_ushort v46, v6, {SX}, 0 offen
s_cmp_lt_u32 s2, 192
s_cbranch_scc1 X_NOINIT
s_barrier
s_cmp_ge_u32 s2, 198
s_cbranch_scc1 X_NOINIT
s_barrier''')
a.label('X_NOINIT')
a('s_waitcnt vmcnt(0)')
x8=list(range(60,68)); unpack8(x8,56)
ln_stats(x8,44,45,47)
a('v_lshlrev_b32 v46, 16, v46\nv_sub_f32 v46, v46, v44')
bf16r(46,46)
div1(18,46,45,20,21)
bf16r(46,18)
a(f'''v_lshlrev_b32 v1, 2, v0
s_cmp_ge_u32 s2, 192
s_cbranch_scc1 X_B1
s_cmp_lg_u32 s39, 8
s_cbranch_scc1 X_B1''')
poll_dbg(32,6)
a.label('X_B1')
a(BAR)
a(f'''s_cmp_ge_u32 s2, 192
s_cbranch_scc1 X_A
s_cmp_lg_u32 s39, 8
s_cbranch_scc1 X_A''')
sum8_lds(0,256,8,1)
a(f'''s_mul_i32 s3, s32, 12288
s_lshl_b32 s28, s33, 8
s_add_u32 s3, s3, s28
buffer_store_dword v8, v1, {WS}, s3 offen offset:{MODP} {SC1}''')
a.label('X_A')
if not DMA0: a(BAR)
a('v_lshlrev_b32 v6, 1, v6\ns_mov_b32 s25, 12288\ns_mov_b32 s26, 24576\ns_mov_b32 s27, 36864')
gather([f'buffer_load_dword v{16+2*p+k}, v6, {WS}, {"0" if p==0 else "s%d"%(24+p)} offen offset:{MODP+k*2048}' for p in range(4) for k in range(2)], range(16,24))
a('''v_add_f32 v16, v16, v18
v_add_f32 v20, v20, v22
v_add_f32 v17, v17, v19
v_add_f32 v21, v21, v23
v_add_f32 v16, v16, v20
v_add_f32 v17, v17, v21''')
bf16r2(16,17,16,17,47)
a('v_add_f32 v17, 1.0, v17')
bf16r(17,17)
a('v_mul_f32 v18, v46, v17')
bf16r(18,18)
a('v_add_f32 v18, v18, v16')
bf16r(18,18)
a('ds_write_b32 v1, v18 offset:4096\ns_waitcnt lgkmcnt(0)')
a(BAR)
a('s_cmp_lg_u32 s39, 8\ns_cbranch_scc1 X_B3')
poll_dbg(0,64)
a.label('X_B3')
a(BAR)
a('s_cmp_lg_u32 s39, 8\ns_cbranch_scc1 X_Q')
sum8_lds(2048,256,8,1)
a(f'''s_lshl_b32 s3, s2, 8
s_add_u32 s3, s3, {QP}
buffer_store_dword v8, v1, {WS}, s3 offen {SC1}''')
a.label('X_Q')
if not DMA0: a(BAR)
a(f'''v_and_b32 v7, 63, v0
v_lshlrev_b32 v7, 2, v7
s_lshl_b32 s3, s30, 11
s_sub_u32 s28, s39, 8
s_lshl_b32 s28, s28, 10
s_add_u32 s3, s3, s28
s_add_u32 s3, s3, {QP}''')
gather([f'buffer_load_dword v{16+m}, v7, {WS}, s3 offen offset:{256*m}' for m in range(4)], range(16,20))
a('''v_add_f32 v16, v16, v17
v_add_f32 v18, v18, v19
v_add_f32 v16, v16, v18''')
bf16r(16,16)
a('ds_write_b32 v1, v16 offset:4608\ns_waitcnt lgkmcnt(0)')
a(BAR)
a(BAR)
a(BAR)
a(f'''s_cmp_lt_u32 s2, {H0}
s_cbranch_scc1 X_MGD
s_mov_b32 s24, 4096
s_mov_b32 s25, {4096+12288}
s_mov_b32 s26, {4096+24576}
s_mov_b32 s27, {4096+36864}
v_add_u32 v6, 4096, v1''')
gather([f'buffer_load_dword v{72+16*rr+4*p+k}, v{1 if k<2 else 6}, {WS}, s{24+p} offen offset:{MODP+(k%2)*2048+512*rr}' for rr in range(4) for p in range(4) for k in range(4)], range(72,136))
for rr in range(4):
    b=72+16*rr
    for k in range(4): a(f'v_add_f32 v{b+k}, v{b+k}, v{b+4+k}\nv_add_f32 v{b+8+k}, v{b+8+k}, v{b+12+k}\nv_add_f32 v{b+k}, v{b+k}, v{b+8+k}')
    bf16r2(b,b+1,b,b+1,20); bf16r2(b+2,b+3,b+2,b+3,20)
    a(f'v_add_f32 v{b+2}, 1.0, v{b+2}')
    bf16r(b+2,b+2)
    a(f'v_lshlrev_b32 v7, 2, v1\nv_add_u32 v7, {MGL+2048*rr}, v7\nds_write_b128 v7, v[{b}:{b+3}]')
a('s_waitcnt lgkmcnt(0)')
a.label('X_MGD')
a(BAR)
a(BAR)
a(BAR)
sum8_lds(4096,512,8,1)
a(f'''s_lshl_b32 s3, s2, 9
s_add_u32 s3, s3, {CP}
buffer_store_dword v8, v1, {WS}, s3 offen {SC1}''')
a(BAR)
a(BAR)
a(f'''s_cmp_lg_u32 s39, 8
s_cbranch_scc1 X_END
v_cmp_gt_u32 vcc, 16, v0
s_and_saveexec_b64 s[36:37], vcc''')
sum8_lds(12288,64,8,1)
a(f'''s_lshr_b32 s3, s2, 5
s_lshl_b32 s3, s3, 11
s_and_b32 s28, s2, 31
s_lshl_b32 s28, s28, 6
s_add_u32 s3, s3, s28
s_add_u32 s3, s3, {OP}
buffer_store_dword v8, v1, {WS}, s3 offen {SC1}''')
a.label('X_END')
a.label('K_END'); a('s_endpgm')

KD=f'''.amdhsa_kernel {KN}
  .amdhsa_next_free_vgpr 160
  .amdhsa_next_free_sgpr 102
  .amdhsa_accum_offset 160
  .amdhsa_group_segment_fixed_size 0
  .amdhsa_kernarg_size 128
  .amdhsa_user_sgpr_count 2
  .amdhsa_user_sgpr_kernarg_segment_ptr 1
  .amdhsa_system_sgpr_workgroup_id_x 1
.end_amdhsa_kernel'''
out=[l for l in HDR if l.startswith(';') and '@launch' not in l and 'Override' not in l and 'grid=ceil' not in l]
out.append(f'; @launch grid=(256,1,1) block=(640,1,1) lds={LDS}')
out.append('.amdgcn_target "amdgcn-amd-amdhsa--gfx950"\n.text')
out+=a.L
out.append('.section .rodata,"a"\n.p2align 6\n'+KD)
dst=sys.argv[1] if len(sys.argv)>1 else 'cdna_kernels/%s.s'%NAME
open(dst,'w').write('\n'.join(out)+'\n')
print('wrote',dst,len(a.L),'lines')
```

```python
import sys, os
NAME='adaLN_cond__compressed_kv_cla__mixer_channel_mlp__decode'
HDR=open('cdna_kernels/%s.s.ref'%NAME).read().split('\n')
KN=NAME+'_kernel'
TS=os.environ.get('TS','0')=='1'
NST=os.environ.get('NST','').split(',')
SLP=os.environ.get('SLP','1')
DSL=os.environ.get('DSL','2')
SC1='sc1'
DMA0=os.environ.get('DMA0','0')=='1'
UVC=os.environ.get('UVC','0')
MODP=0x0
QP=0x10000
QA=0x20000
STAT=0x30000
CP=0x40000
OP=0x60000
O2P=0x70000
PART=0x100000
TSOFF=0x500000
WSBYTES=0x600000
XCH=0; RB=16384; REG=64*128; MGL=RB+8*REG; SC2=MGL+8192; LDS=SC2+2048
NG5=43; G0=213; H0=205
WQ=72; WUK=80; WUV=88; WO=96; TSV=104; VDMA=119; XE=120; B1=121; B2=122; VRED=123; MG=124; W1=128; W2=144
S_WS=4; S_DBG=8; S_X=12; S_A=16; S_B=20; S_C=96; P=40
LOG2E='0x3fb8aa3b'
WS=f's[{S_WS}:{S_WS+3}]'
SA=f's[{S_A}:{S_A+3}]'; SB=f's[{S_B}:{S_B+3}]'; SC=f's[{S_C}:{S_C+3}]'; SX=f's[{S_X}:{S_X+3}]'; SD=f's[{S_DBG}:{S_DBG+3}]'

class A:
    def __init__(s): s.L=[]
    def __call__(s,x):
        for l in x.strip('\n').split('\n'): s.L.append('    '+l.strip())
    def label(s,x): s.L.append(x+':')
    def nop(s,n):
        while n>0:
            k=min(n,16); s('s_nop %d'%(k-1)); n-=k
a=A()
def srd(d,lo,hi,nbytes):
    a(f's_mov_b32 s{d}, s{lo}\ns_mov_b32 s{d+1}, s{hi}\ns_mov_b32 s{d+2}, {nbytes}\ns_mov_b32 s{d+3}, 0x20000')
def srdp(d,i,n): srd(d,P+2*i,P+2*i+1,n)
def dpp(op,d,s0,s1,ctl): a(f'{op}_dpp v{d}, v{s0}, v{s1} {ctl} row_mask:0xf bank_mask:0xf')
def wave_allreduce(op, regs, tmps):
    for ctl in ['row_ror:8','row_ror:4','row_ror:2','row_ror:1']:
        a.nop(2 if len(regs)<3 else 1)
        for r in regs: dpp(op,r,r,r,ctl)
    for sw in ['v_permlane16_swap_b32','v_permlane32_swap_b32']:
        for r,t in zip(regs,tmps): a(f'v_mov_b32 v{t}, v{r}')
        a.nop(2)
        for r,t in zip(regs,tmps): a(f'{sw} v{r}, v{t}')
        a.nop(1)
        for r,t in zip(regs,tmps): a(f'{op} v{r}, v{r}, v{t}')
def bf16r(d,s_): a(f'v_cvt_pk_bf16_f32 v{d}, v{s_}, v{s_}\nv_lshlrev_b32 v{d}, 16, v{d}')
def bf16r2(d0,d1,s0,s1,t): a(f'v_cvt_pk_bf16_f32 v{t}, v{s0}, v{s1}\nv_lshlrev_b32 v{d0}, 16, v{t}\nv_and_b32 v{d1}, 0xffff0000, v{t}')
def halve8(acc):
    a.nop(2)
    for i in range(4): a(f'v_permlane32_swap_b32 v{acc[i]}, v{acc[i+4]}')
    a.nop(1)
    for i in range(4): a(f'v_add_f32 v{acc[i]}, v{acc[i]}, v{acc[i+4]}')
    a.nop(1)
    for i in range(2): a(f'v_permlane16_swap_b32 v{acc[i]}, v{acc[i+2]}')
    a.nop(1)
    for i in range(2): a(f'v_add_f32 v{acc[i]}, v{acc[i]}, v{acc[i+2]}')
    return acc[0],acc[1]
def halve16(acc, rors):
    a.nop(2)
    for i in range(8): a(f'v_permlane32_swap_b32 v{acc[i]}, v{acc[i+8]}')
    a.nop(1)
    for i in range(8): a(f'v_add_f32 v{acc[i]}, v{acc[i]}, v{acc[i+8]}')
    a.nop(1)
    for i in range(4): a(f'v_permlane16_swap_b32 v{acc[i]}, v{acc[i+4]}')
    a.nop(1)
    for i in range(4): a(f'v_add_f32 v{acc[i]}, v{acc[i]}, v{acc[i+4]}')
    for ctl in rors:
        for i in range(4): dpp('v_add_f32',acc[i],acc[i],acc[i],ctl)
    return acc[:4]
def mul8(acc,w,sc,first,t0=42,t1=43):
    for k in range(4):
        a(f'v_lshlrev_b32 v{t0}, 16, v{w+k}\nv_and_b32 v{t1}, 0xffff0000, v{w+k}')
        op='v_mul_f32' if first else 'v_fmac_f32'
        a(f'{op} v{acc[2*k]}, v{sc}, v{t0}\n{op} v{acc[2*k+1]}, v{sc}, v{t1}')
def mulN(acc,w,n,sc,t0=42,t1=43):
    for k in range(n):
        a(f'v_lshlrev_b32 v{t0}, 16, v{w+k}\nv_and_b32 v{t1}, 0xffff0000, v{w+k}\nv_mul_f32 v{acc[2*k]}, v{sc}, v{t0}\nv_mul_f32 v{acc[2*k+1]}, v{sc}, v{t1}')
def ln_fin(vm,vs,t0):
    bf16r2(vm,vs,vm,vs,t0)
    a(f'v_add_f32 v{vs}, 0x3727c5ac, v{vs}')
    bf16r(vs,vs)
    a(f'v_sqrt_f32 v{vs}, v{vs}\ns_nop 0')
    bf16r(vs,vs)
def ln_stats(x8, vm, vs, t0):
    a(f'v_add_f32 v{vm}, v{x8[0]}, v{x8[1]}')
    for k in range(2,8): a(f'v_add_f32 v{vm}, v{vm}, v{x8[k]}')
    wave_allreduce('v_add_f32',[vm],[t0])
    a(f'v_mul_f32 v{vm}, 0x3b000000, v{vm}\nv_mov_b32 v{vs}, 0')
    for k in range(8): a(f'v_sub_f32 v{t0}, v{x8[k]}, v{vm}\nv_fmac_f32 v{vs}, v{t0}, v{t0}')
    wave_allreduce('v_add_f32',[vs],[t0])
    a(f'v_mul_f32 v{vs}, 0x3b000000, v{vs}')
    ln_fin(vm,vs,t0)
def div1(d,n,den,t0,t1):
    a(f'''v_rcp_f32 v{t0}, v{den}
    s_nop 0
    v_mul_f32 v{t1}, v{n}, v{t0}
    v_fma_f32 v{d}, -v{t1}, v{den}, v{n}
    v_fma_f32 v{d}, v{d}, v{t0}, v{t1}''')
def unpack8(dst, src):
    for k in range(4): a(f'v_and_b32 v{dst[2*k+1]}, 0xffff0000, v{src+k}\nv_lshlrev_b32 v{dst[2*k]}, 16, v{src+k}')
def sum8r(b):
    a(f'''v_add_f32 v{b}, v{b}, v{b+1}
    v_add_f32 v{b+2}, v{b+2}, v{b+3}
    v_add_f32 v{b+4}, v{b+4}, v{b+5}
    v_add_f32 v{b+6}, v{b+6}, v{b+7}
    v_add_f32 v{b}, v{b}, v{b+2}
    v_add_f32 v{b+4}, v{b+4}, v{b+6}
    v_add_f32 v{b}, v{b}, v{b+4}''')
def sum8_lds(off,stride,dst,addr):
    for w in range(8): a(f'ds_read_b32 v{8+w}, v{addr} offset:{off+w*stride}')
    a('s_waitcnt lgkmcnt(0)')
    sum8r(8)
    if dst!=8: a(f'v_mov_b32 v{dst}, v8')
lid=[0]
def L(p):
    lid[0]+=1; return f'{p}{lid[0]}'
def nstamp(nm):
    if TS and nm in NST:
        i=1+NST.index(nm)
        a(f's_memrealtime s[100:101]\ns_waitcnt lgkmcnt(0)\nv_mov_b32 v{TSV+2*i}, s100\nv_mov_b32 v{TSV+1+2*i}, s101')
def tsend():
    if not TS: return
    a(f'''s_waitcnt vmcnt(0)
    s_memrealtime s[100:101]
    s_mov_b64 exec, -1
    v_cmp_eq_u32 vcc, 0, v0
    s_and_saveexec_b64 s[36:37], vcc
    s_waitcnt lgkmcnt(0)
    v_mov_b32 v5, 0
    s_lshl_b32 s3, s2, 6
    s_add_u32 s3, s3, {TSOFF}
    v_mov_b32 v0, s100
    v_mov_b32 v1, s101
    v_mov_b32 v2, 0
    v_mov_b32 v3, 0
    buffer_store_dwordx4 v[{TSV}:{TSV+3}], v5, s[4:7], s3 offen
    buffer_store_dwordx4 v[{TSV+4}:{TSV+7}], v5, s[4:7], s3 offen offset:16
    buffer_store_dwordx4 v[{TSV+8}:{TSV+11}], v5, s[4:7], s3 offen offset:32
    buffer_store_dwordx4 v[0:3], v5, s[4:7], s3 offen offset:48''')
def gather(loads, regs):
    l0=L('GA'); l1=L('GD')
    a('s_mov_b32 s38, 0')
    a.label(l0)
    for x in loads: a(x+' '+SC1)
    a('s_add_u32 s38, s38, 1\ns_waitcnt vmcnt(0)')
    r=list(regs)
    if len(r)==1: a(f'v_mov_b32 v70, v{r[0]}'); i=1
    elif len(r)==2: a(f'v_max_u32 v70, v{r[0]}, v{r[1]}'); i=2
    else: a(f'v_max3_u32 v70, v{r[0]}, v{r[1]}, v{r[2]}'); i=3
    while i<len(r):
        if i+1<len(r): a(f'v_max3_u32 v70, v70, v{r[i]}, v{r[i+1]}'); i+=2
        else: a(f'v_max_u32 v70, v70, v{r[i]}'); i+=1
    a(f'''v_cmp_eq_u32 vcc, -1, v70
    s_cmp_gt_u32 s38, 0x40000
    s_cbranch_scc1 {l1}
    s_nop 2
    s_cmp_eq_u64 vcc, 0
    s_cbranch_scc1 {l1}
    s_sleep {SLP}
    s_branch {l0}''')
    a.label(l1)
def poll_dbg(word,val):
    l0=L('WA'); l1=L('WD')
    a('s_mov_b32 s38, 0\nv_mov_b32 v71, 0')
    a.label(l0)
    a(f'''buffer_load_dword v70, v71, {SD}, 0 offen offset:{4*word} {SC1}
    s_add_u32 s38, s38, 1
    s_waitcnt vmcnt(0)
    v_readfirstlane_b32 s3, v70
    s_cmp_gt_u32 s38, 0x40000
    s_cbranch_scc1 {l1}
    s_cmp_ge_u32 s3, {val}
    s_cbranch_scc1 {l1}
    s_sleep {DSL}
    s_branch {l0}''')
    a.label(l1)
def red8_w(acc, off):
    c0,c1=halve8(acc)
    a.nop(2)
    dpp('v_add_f32',c0,c0,c0,'row_ror:8'); dpp('v_add_f32',c1,c1,c1,'row_ror:8')
    a(f'ds_write_b64 v{VRED}, v[{c0}:{c1}] offset:{off}\ns_waitcnt lgkmcnt(0)')
BAR='s_barrier'

a.L.append(f'.globl {KN}\n.p2align 8\n.type {KN},@function\n{KN}:')
if TS:
    a(f's_memrealtime s[100:101]\ns_waitcnt lgkmcnt(0)\nv_mov_b32 v{TSV}, s100\nv_mov_b32 v{TSV+1}, s101')
    for i in range(TSV+2,TSV+12): a(f'v_mov_b32 v{i}, 0')
DBGT=os.environ.get('DBGT','0')=='1'
if DBGT: a('s_memrealtime s[72:73]')
a(f'''s_cmp_ge_u32 s2, 256
s_cbranch_scc1 K_END
s_load_dwordx16 s[40:55], s[0:1], 0
s_load_dwordx16 s[56:71], s[0:1], 64
v_lshrrev_b32 v1, 6, v0
v_lshrrev_b32 v4, 3, v0
v_readfirstlane_b32 s39, v1
v_and_b32 v5, 7, v0
s_lshr_b32 s30, s2, 3
s_and_b32 s31, s2, 7
s_and_b32 s32, s2, 3
s_lshr_b32 s33, s2, 2
s_cmp_ge_u32 s39, 8
s_cbranch_scc1 AUX''')
a(f'''s_lshl_b32 s3, s32, 7
v_add_u32 v6, s3, v4
v_lshlrev_b32 v7, 1, v6
v_mul_u32_u24 v8, 0x1800, v6
v_lshl_add_u32 v8, v5, 4, v8
s_lshl_b32 s3, s33, 7
v_add_u32 v8, s3, v8
s_mov_b32 s34, 393216
v_lshlrev_b32 v9, 13, v6
v_lshl_add_u32 v9, v5, 4, v9
s_lshl_b32 s3, s30, 8
s_bfe_u32 s28, s2, 0x10002
s_lshl_b32 s28, s28, 7
s_add_u32 s3, s3, s28
v_add_u32 v9, s3, v9
s_mov_b32 s35, 0x80000
v_lshlrev_b32 v10, 13, v4
v_lshl_add_u32 v10, v5, 5, v10
s_lshl_b32 s3, s31, 19
s_lshl_b32 s28, s30, 8
s_add_u32 s74, s3, s28
v_lshlrev_b32 v12, 1, v0
s_lshl_b32 s3, s39, 8
v_lshlrev_b32 v{VRED}, 5, v5
v_add_u32 v{VRED}, s3, v{VRED}
v_bfe_u32 v2, v0, 4, 1
v_lshl_add_u32 v{VRED}, v2, 3, v{VRED}
v_bfe_u32 v2, v0, 5, 1
v_lshl_add_u32 v{VRED}, v2, 4, v{VRED}
s_and_b32 s77, s2, 63
s_lshr_b32 s78, s2, 6
v_and_b32 v1, 63, v0
v_lshrrev_b32 v2, 3, v1
v_and_b32 v3, 7, v1
v_xor_b32 v3, v3, v2
v_lshlrev_b32 v3, 4, v3
v_lshl_add_u32 v{VDMA}, v2, 10, v3
s_lshl_b32 s3, s39, 7
s_lshl_b32 s29, s77, 16
s_add_u32 s29, s29, s3
s_mul_i32 s79, s39, {REG}
s_add_u32 s79, s79, {RB}
s_sub_u32 s76, s2, {G0}
s_waitcnt lgkmcnt(0)''')
srdp(S_WS,15,WSBYTES); srdp(S_X,0,1024); srdp(S_A,12,3145728); srdp(S_B,11,1024)
a('s_cmp_lt_u32 s2, 192\ns_cbranch_scc1 C_MLD')
srdp(S_DBG,14,256)
a(f'''s_sub_u32 s28, s2, 192
v_lshlrev_b32 v1, 4, v0
v_mov_b32 v16, -1
v_mov_b32 v17, -1
v_mov_b32 v18, -1
v_mov_b32 v19, -1
v_mov_b32 v20, 1
v_mov_b32 v21, 0
s_lshl_b32 s3, s28, 13
s_cmp_ge_u32 s28, 6
s_cbranch_scc1 C_INIT2
buffer_store_dwordx4 v[16:19], v1, {WS}, s3 offen {SC1}
s_waitcnt vmcnt(0)
s_barrier
v_cmp_eq_u32 vcc, 0, v0
s_and_saveexec_b64 s[36:37], vcc
buffer_atomic_add v20, v21, {SD}, 0 offen offset:128
s_mov_b64 exec, s[36:37]''')
a.label('C_INIT2')
a(f'''s_add_u32 s3, s3, 0x10000
buffer_store_dwordx4 v[16:19], v1, {WS}, s3 offen {SC1}
s_waitcnt vmcnt(0)
s_barrier
v_cmp_eq_u32 vcc, 0, v0
s_and_saveexec_b64 s[36:37], vcc
buffer_atomic_add v20, v21, {SD}, 0 offen
s_mov_b64 exec, s[36:37]
s_branch C_NOM''')
a.label('C_MLD')
a(f'''buffer_load_ushort v24, v7, {SB}, 0 offen
buffer_load_ushort v25, v7, {SB}, 0 offen offset:128
buffer_load_dwordx4 v[32:35], v8, {SA}, 0 offen
buffer_load_dwordx4 v[36:39], v8, {SA}, s34 offen''')
a.label('C_NOM')
srdp(S_A,2,4194304); srdp(S_B,3,4194304); srdp(S_C,1,4194304)
a(f'''buffer_load_dwordx4 v[{WQ}:{WQ+3}], v9, {SA}, 0 offen
buffer_load_dwordx4 v[{WQ+4}:{WQ+7}], v9, {SA}, s35 offen
buffer_load_dwordx4 v[{WUK}:{WUK+3}], v10, {SB}, s74 offen
buffer_load_dwordx4 v[{WUK+4}:{WUK+7}], v10, {SB}, s74 offen offset:16
buffer_load_ushort v{XE}, v12, {SX}, 0 offen''')
srdp(S_A,10,1024)
a(f'buffer_load_ushort v{B2}, v12, {SA}, 0 offen')
def dma(lo,hi):
    for i in range(lo,hi):
        a(f's_add_u32 m0, s79, {1024*i}\ns_add_u32 s3, s29, {8192*i}\nbuffer_load_dwordx4 v{VDMA}, {SC}, s3 offen lds')
def stage_uv():
    srdp(S_A,4,4194304); srdp(S_B,5,4194304)
    a(f'''v_lshrrev_b32 v4, 3, v0
    v_and_b32 v5, 7, v0
    v_lshlrev_b32 v10, 13, v4
    v_lshl_add_u32 v10, v5, 5, v10
    buffer_load_dwordx4 v[{WUV}:{WUV+3}], v10, {SA}, s74 offen
    buffer_load_dwordx4 v[{WUV+4}:{WUV+7}], v10, {SA}, s74 offen offset:16''')
def stage_o():
    a(f'''s_lshr_b32 s3, s2, 5
    s_lshl_b32 s3, s3, 19
    s_and_b32 s28, s2, 31
    s_lshl_b32 s28, s28, 5
    s_add_u32 s3, s3, s28
    v_lshrrev_b32 v11, 1, v0
    v_lshlrev_b32 v11, 10, v11
    v_and_b32 v15, 1, v0
    v_lshl_add_u32 v11, v15, 4, v11
    s_add_u32 s28, s3, 0x40000
    buffer_load_dwordx4 v[{WO}:{WO+3}], v11, {SB}, s3 offen
    buffer_load_dwordx4 v[{WO+4}:{WO+7}], v11, {SB}, s28 offen''')
def gload():
    srdp(S_A,7,512*2752); srdp(S_B,9,1376*1024)
    a(f'''v_lshrrev_b32 v6, 2, v0
    v_mul_u32_u24 v6, 2752, v6
    v_and_b32 v15, 3, v0
    v_lshl_add_u32 v6, v15, 4, v6
    s_lshl_b32 s28, s76, 6''')
    for q in range(4):
        a(f's_add_u32 s3, s28, {2752*128*q}\nbuffer_load_dwordx4 v[{W1+4*q}:{W1+4*q+3}], v6, {SA}, s3 offen')
    srdp(S_A,8,2752)
    a(f'''v_and_b32 v6, 31, v0
    v_lshlrev_b32 v6, 1, v6
    buffer_load_ushort v{B1}, v6, {SA}, s28 offen
    v_and_b32 v6, 255, v0
    v_lshlrev_b32 v6, 2, v6
    s_lshl_b32 s3, s76, 15
    s_lshr_b32 s28, s39, 2
    s_lshl_b32 s28, s28, 14
    s_add_u32 s3, s3, s28''')
    for d in range(16):
        if d%4==0 and d>0: a('s_add_u32 s3, s3, 4096')
        a(f'buffer_load_dword v{W2+d}, v6, {SB}, s3 offen offset:{1024*(d%4)}')
ND=8 if DMA0 else 0
if DMA0: dma(0,8)
a(f's_cmp_lt_u32 s2, {G0}\ns_cbranch_scc1 C_NOG')
gload()
a(f's_waitcnt vmcnt({23+ND})')
a.label('C_NOG')
a('s_cmp_ge_u32 s2, 192\ns_cbranch_scc1 C_M_DONE\ns_waitcnt vmcnt(%d)'%(8+ND))
for i in range(2): a(f'v_lshlrev_b32 v{24+i}, 16, v{24+i}\nv_mul_f32 v{28+i}, 0xbfb8aa3b, v{24+i}')
for i in range(2): a(f'v_exp_f32 v{28+i}, v{28+i}')
a('s_nop 0')
for i in range(2): a(f'v_add_f32 v{28+i}, 1.0, v{28+i}')
for i in range(2): a(f'v_rcp_f32 v{28+i}, v{28+i}')
a('s_nop 0')
for i in range(2): a(f'v_mul_f32 v{24+i}, v{24+i}, v{28+i}')
bf16r2(24,25,24,25,28)
acc=list(range(48,56))
a(f's_waitcnt vmcnt({6+ND})')
mul8(acc,32,24,True); mul8(acc,36,25,False)
red8_w(acc,0)
a.label('C_M_DONE')
nstamp('m_pre')
a(BAR)
nstamp('m_done')
if not DMA0:
    a(BAR)
    dma(0,4)
a(f's_cmp_ge_u32 s2, {G0}\ns_cbranch_scc1 CW1\ns_waitcnt vmcnt({12 if DMA0 else 8})')
a.label('CW1')
a('v_lshlrev_b32 v3, 2, v4')
a(BAR)
nstamp('a_gath')
a('ds_read_b32 v40, v3 offset:4096\nds_read_b32 v41, v3 offset:4352\ns_waitcnt lgkmcnt(0)')
mul8(acc,WQ,40,True); mul8(acc,WQ+4,41,False)
red8_w(acc,2048)
a(BAR)
nstamp('a_done')
if not DMA0:
    a(BAR)
    dma(4,8)
a(f's_cmp_ge_u32 s2, {G0}\ns_cbranch_scc1 CW2\ns_waitcnt vmcnt(10)')
a.label('CW2')
a('v_lshlrev_b32 v1, 6, v5')
a(BAR)
nstamp('b_gath')
for q in range(4): a(f'ds_read_b128 v[{16+4*q}:{19+4*q}], v1 offset:{4608+16*q}')
a('s_waitcnt lgkmcnt(0)')
for k in range(8):
    a(f'v_lshlrev_b32 v42, 16, v{WUK+k}\nv_and_b32 v43, 0xffff0000, v{WUK+k}')
    if k==0: a('v_mul_f32 v48, v16, v42\nv_mul_f32 v49, v17, v43')
    else: a(f'v_fmac_f32 v48, v{16+2*k}, v42\nv_fmac_f32 v49, v{17+2*k}, v43')
a('v_add_f32 v48, v48, v49')
for ctl in ['quad_perm:[1,0,3,2]','quad_perm:[2,3,0,1]','row_half_mirror']:
    a.nop(2); dpp('v_add_f32',48,48,48,ctl)
a(f'''v_cvt_pk_bf16_f32 v49, v48, v48
v_and_b32 v50, 0xffff0000, v49
v_sub_f32 v48, v48, v50
v_cvt_pk_bf16_f32 v48, v48, v48
v_and_b32 v49, 0xffff, v49
v_lshl_or_b32 v48, v48, 16, v49
v_lshlrev_b32 v1, 2, v4
s_lshl_b32 s3, s2, 8
s_add_u32 s3, s3, {QA}
v_cmp_eq_u32 vcc, 0, v5
s_and_saveexec_b64 s[36:37], vcc
buffer_store_dword v48, v1, {WS}, s3 offen {SC1}
s_mov_b64 exec, s[36:37]''')
a(BAR)
nstamp('b_done')
if UVC=='0': stage_uv()
a(f'''v_and_b32 v1, 63, v0
v_lshrrev_b32 v2, 4, v1
v_and_b32 v3, 15, v1
v_min_u32 v6, 7, v3
v_lshlrev_b32 v6, 11, v6
v_lshl_add_u32 v6, v2, 5, v6
s_lshl_b32 s24, s78, 14
s_lshl_b32 s26, s39, 8
s_add_u32 s24, s24, s26
s_add_u32 s24, s24, {QA}
v_and_b32 v7, 7, v3
v_xor_b32 v7, v7, v2
v_lshlrev_b32 v7, 4, v7
v_lshl_add_u32 v7, v3, 7, v7
v_add_u32 v7, s79, v7
v_xor_b32 v8, 64, v7
v_and_b32 v9, 7, v3
v_lshl_add_u32 v11, v2, 3, v9
v_lshlrev_b32 v11, 4, v11
s_lshl_b32 s3, s39, 11
v_add_u32 v12, s3, v11
s_mov_b32 s25, 0x05040100
s_mov_b32 s26, 0x07060302''')
D1=56
for r in range(16): a(f'v_mov_b32 v{D1+r}, 0')
gather([f'buffer_load_dwordx4 v[{16+4*q}:{19+4*q}], v6, {WS}, s24 offen offset:{(q>>1)*128+(q&1)*16}' for q in range(4)], range(16,32))
nstamp('c_gath')
a('v_mov_b32 v70, 0\nv_mov_b32 v71, 0\nv_mov_b32 v14, v11')
if UVC=='1': stage_uv(); stage_o()
if UVC=='2': stage_uv()
a('v_mov_b32 v11, v14')
for s_ in range(2):
    for k in range(4):
        x0=16+8*s_+2*k
        a(f'v_perm_b32 v{32+4*s_+k}, v{x0+1}, v{x0}, s25\nv_perm_b32 v{40+4*s_+k}, v{x0+1}, v{x0}, s26')
for T in range(4):
    base=16+8*(T&1)
    a(f'ds_read_b128 v[{base}:{base+3}], v7 offset:{2048*T}\nds_read_b128 v[{base+4}:{base+7}], v8 offset:{2048*T}')
    for s_ in range(2):
        a(f's_waitcnt lgkmcnt({1-s_})')
        a(f'v_mfma_f32_16x16x32_bf16 v[{D1+4*T}:{D1+4*T+3}], v[{base+4*s_}:{base+4*s_+3}], v[{32+4*s_}:{35+4*s_}], v[{D1+4*T}:{D1+4*T+3}]')
        a(f'v_mfma_f32_16x16x32_bf16 v[{D1+4*T}:{D1+4*T+3}], v[{base+4*s_}:{base+4*s_+3}], v[{40+4*s_}:{43+4*s_}], v[{D1+4*T}:{D1+4*T+3}]')
a('v_cmp_gt_u32 vcc, 8, v3\ns_and_saveexec_b64 s[36:37], vcc')
a.nop(7)
for T in range(4): a(f'ds_write_b128 v12, v[{D1+4*T}:{D1+4*T+3}] offset:{XCH+512*T}')
a('s_mov_b64 exec, s[36:37]\ns_waitcnt lgkmcnt(0)')
a(BAR)
nstamp('c_g1')
P0=16
a(f'''s_lshr_b32 s3, s39, 1
s_lshl_b32 s3, s3, 9
s_and_b32 s28, s39, 1
s_lshl_b32 s28, s28, 3
s_add_u32 s3, s3, s28
v_add_u32 v12, s3, v11''')
for w in range(8): a(f'ds_read_b64 v[{16+2*w}:{17+2*w}], v12 offset:{XCH+w*2048}')
a(f'v_add_u32 v12, {SC2}, v12\nv_add_u32 v11, {SC2}, v11\ns_waitcnt lgkmcnt(0)')
for k in range(2):
    a(f'''v_add_f32 v{16+k}, v{16+k}, v{18+k}
    v_add_f32 v{20+k}, v{20+k}, v{22+k}
    v_add_f32 v{24+k}, v{24+k}, v{26+k}
    v_add_f32 v{28+k}, v{28+k}, v{30+k}
    v_add_f32 v{16+k}, v{16+k}, v{20+k}
    v_add_f32 v{24+k}, v{24+k}, v{28+k}
    v_add_f32 v{16+k}, v{16+k}, v{24+k}''')
bf16r2(16,17,16,17,18)
a('v_mul_f32 v16, 0x3db504f3, v16\nv_mul_f32 v17, 0x3db504f3, v17')
bf16r2(16,17,16,17,18)
a('ds_write_b64 v12, v[16:17]\ns_waitcnt lgkmcnt(0)')
a(BAR)
for T in range(4): a(f'ds_read_b128 v[{16+4*T}:{19+4*T}], v11 offset:{512*T}')
a('s_waitcnt lgkmcnt(0)')
nstamp('c_x')
a(f'v_max_f32 v32, v{P0}, v{P0+1}')
for r in range(2,16,2): a(f'v_max3_f32 v32, v32, v{P0+r}, v{P0+r+1}')
for sw in ['v_permlane16_swap_b32','v_permlane32_swap_b32']:
    a(f'v_mov_b32 v33, v32\ns_nop 1\n{sw} v32, v33\ns_nop 1\nv_max_f32 v32, v32, v33')
a(f's_mov_b32 s3, {LOG2E}\nv_mul_f32 v33, s3, v32')
for r in range(16): a(f'v_fma_f32 v{P0+r}, v{P0+r}, s3, -v33')
for r in range(16): a(f'v_exp_f32 v{P0+r}, v{P0+r}')
a(f'''v_lshrrev_b32 v7, 2, v3
v_lshl_add_u32 v7, v2, 2, v7
v_and_b32 v8, 7, v7
v_bfe_u32 v9, v1, 1, 1
v_xor_b32 v8, v8, v9
v_lshlrev_b32 v8, 4, v8
v_lshl_add_u32 v8, v7, 7, v8
v_and_b32 v9, 1, v1
v_lshl_add_u32 v8, v9, 3, v8
v_add_u32 v8, s79, v8''')
for kk in range(2):
    for hh in range(2):
        T=2*kk+hh
        a(f'v_cvt_pk_bf16_f32 v{40+4*kk+2*hh}, v{P0+4*T}, v{P0+4*T+1}\nv_cvt_pk_bf16_f32 v{41+4*kk+2*hh}, v{P0+4*T+2}, v{P0+4*T+3}')
nstamp('c_sm')
D2=56
for r in range(16): a(f'v_mov_b32 v{D2+r}, 0')
FRG=[72,76,80,84,48,52,16,20]
def rdt(t):
    a(f'v_xor_b32 v13, {t<<5}, v8')
    for kk in range(2):
        f=FRG[t*2+kk]
        a(f'ds_read_b64_tr_b16 v[{f}:{f+1}], v13 offset:{2048*(2*kk)}\nds_read_b64_tr_b16 v[{f+2}:{f+3}], v13 offset:{2048*(2*kk+1)}')
rdt(0); rdt(1); rdt(2)
a(f'v_add_f32 v34, v{P0}, v{P0+1}')
for r in range(2,16): a(f'v_add_f32 v34, v34, v{P0+r}')
rdt(3)
for sw in ['v_permlane16_swap_b32','v_permlane32_swap_b32']:
    a(f'v_mov_b32 v33, v34\ns_nop 1\n{sw} v34, v33\ns_nop 1\nv_add_f32 v34, v34, v33')
for t in range(4):
    for kk in range(2):
        f=FRG[t*2+kk]
        a(f's_waitcnt lgkmcnt({14-2*(t*2+kk)})')
        a(f'v_mfma_f32_16x16x32_bf16 v[{D2+4*t}:{D2+4*t+3}], v[{f}:{f+3}], v[{40+4*kk}:{43+4*kk}], v[{D2+4*t}:{D2+4*t+3}]')
nstamp('c_g2')
a(f'''v_lshlrev_b32 v10, 7, v3
v_lshl_add_u32 v10, v2, 3, v10
v_add_u32 v10, s79, v10
v_lshlrev_b32 v11, 4, v1
v_add_u32 v11, s79, v11
v_lshrrev_b32 v12, 3, v1
v_lshlrev_b32 v12, 16, v12
v_and_b32 v13, 7, v1
v_lshl_add_u32 v12, v13, 4, v12
s_lshl_b32 s24, s78, 19
s_lshl_b32 s26, s77, 10
s_add_u32 s24, s24, s26
s_lshl_b32 s26, s39, 7
s_add_u32 s24, s24, s26
s_add_u32 s24, s24, {PART}
s_lshl_b32 s25, s78, 12
s_lshl_b32 s26, s77, 3
s_add_u32 s25, s25, s26
s_add_u32 s25, s25, {STAT}
v_lshlrev_b32 v9, 9, v3
v_mov_b32 v35, v34
v_mov_b32 v34, v32
v_cmp_gt_u32 vcc, 8, v3
s_and_saveexec_b64 s[36:37], vcc''')
for t in range(4):
    a(f'v_cvt_pk_bf16_f32 v{16+2*t}, v{D2+4*t}, v{D2+4*t+1}\nv_cvt_pk_bf16_f32 v{17+2*t}, v{D2+4*t+2}, v{D2+4*t+3}')
    a(f'ds_write_b64 v10, v[{16+2*t}:{17+2*t}] offset:{32*t}')
a(f'''s_mov_b64 exec, s[36:37]
s_waitcnt lgkmcnt(0)
ds_read_b128 v[16:19], v11
s_waitcnt lgkmcnt(0)
buffer_store_dwordx4 v[16:19], v12, {WS}, s24 offen {SC1}
v_cmp_gt_u32 vcc, 8, v0
s_and_saveexec_b64 s[36:37], vcc
buffer_store_dwordx2 v[34:35], v9, {WS}, s25 offen {SC1}
s_mov_b64 exec, s[36:37]''')
nstamp('c_st')
a(BAR)
nstamp('c_done')
if UVC=='0': stage_o()
a(f'''v_lshrrev_b32 v4, 3, v0
v_and_b32 v5, 7, v0
v_lshlrev_b32 v6, 10, v4
v_lshl_add_u32 v6, v5, 4, v6
s_lshl_b32 s24, s30, 16
s_lshl_b32 s26, s31, 7
s_add_u32 s24, s24, s26
s_add_u32 s24, s24, {PART}
v_and_b32 v1, 63, v0
v_lshlrev_b32 v7, 3, v1
s_lshl_b32 s25, s30, 9
s_add_u32 s25, s25, {STAT}''')
gather([f'buffer_load_dwordx2 v[40:41], v7, {WS}, s25 offen', f'buffer_load_dwordx4 v[16:19], v6, {WS}, s24 offen'], [40,41,16,17,18,19])
nstamp('d_gath')
if UVC=='2': stage_o()
a('v_mov_b32 v42, v40')
wave_allreduce('v_max_f32',[42],[43])
a(f'''v_sub_f32 v40, v40, v42
v_mul_f32 v40, {LOG2E}, v40
v_exp_f32 v40, v40
s_nop 0
v_mul_f32 v41, v41, v40''')
wave_allreduce('v_add_f32',[41],[43])
a('''v_rcp_f32 v41, v41
v_lshlrev_b32 v42, 2, v4
v_mul_f32 v40, v40, v41
s_nop 0
ds_bpermute_b32 v40, v42, v40
s_waitcnt lgkmcnt(0)''')
mul8(acc,16,40,True)
red8_w(acc,0)
a('v_lshlrev_b32 v3, 2, v4')
a(BAR)
sum8_lds(0,256,40,3)
acc16=list(range(16,32))
mulN(acc16,WUV,8,40)
halve16(acc16,['row_ror:8'])
a(f'''s_lshl_b32 s3, s39, 9
v_lshlrev_b32 v1, 6, v5
v_add_u32 v1, s3, v1
v_bfe_u32 v2, v0, 4, 2
v_lshl_add_u32 v1, v2, 4, v1
ds_write_b128 v1, v[16:19] offset:4096
s_waitcnt lgkmcnt(0)''')
a(BAR)
nstamp('d_done')
a(f'''v_lshrrev_b32 v1, 7, v0
v_lshlrev_b32 v1, 12, v1
v_and_b32 v2, 127, v0
v_lshl_add_u32 v1, v2, 2, v1
s_lshr_b32 s3, s2, 5
s_lshl_b32 s3, s3, 14
s_add_u32 s3, s3, {CP}''')
gather([f'buffer_load_dword v{16+j}, v1, {WS}, s3 offen offset:{512*j}' for j in range(8)], range(16,24))
nstamp('e_gath')
sum8r(16)
bf16r(16,16)
a(f'''v_lshlrev_b32 v1, 2, v0
ds_write_b32 v1, v16 offset:8192
v_lshrrev_b32 v3, 1, v0
v_lshlrev_b32 v3, 2, v3
s_waitcnt lgkmcnt(0)''')
a(BAR)
a('ds_read_b32 v40, v3 offset:8192\nds_read_b32 v41, v3 offset:9216\ns_waitcnt lgkmcnt(0)')
mul8(acc,WO,40,True); mul8(acc,WO+4,41,False)
c0,c1=halve8(acc)
for ctl in ['row_ror:8','row_ror:4','row_ror:2']:
    a.nop(2); dpp('v_add_f32',c0,c0,c0,ctl); dpp('v_add_f32',c1,c1,c1,ctl)
a(f'''s_lshl_b32 s3, s39, 6
v_and_b32 v5, 1, v0
v_lshlrev_b32 v3, 5, v5
v_add_u32 v3, s3, v3
v_bfe_u32 v5, v0, 4, 1
v_lshl_add_u32 v3, v5, 3, v3
v_bfe_u32 v5, v0, 5, 1
v_lshl_add_u32 v3, v5, 4, v3
ds_write_b64 v3, v[{c0}:{c1}] offset:12288
s_waitcnt lgkmcnt(0)''')
a(BAR)
nstamp('e_done')
a(f'''s_cmp_lt_u32 s2, {H0}
s_cbranch_scc1 K_TS
v_lshlrev_b32 v1, 4, v0
v_add_u32 v1, {MGL}, v1
ds_read_b128 v[{MG}:{MG+3}], v1
s_cmp_lt_u32 s2, {G0}
s_cbranch_scc1 H_GO''')
a(f'''v_lshlrev_b32 v1, 2, v0
s_mov_b32 s3, {OP}
s_add_u32 s24, s3, 4096
s_add_u32 s25, s3, 8192
s_add_u32 s26, s3, 12288''')
gather([f'buffer_load_dword v{16+k}, v1, {WS}, s{3 if k<2 else 23+k//2} offen offset:{2048*(k%2)}' for k in range(8)], range(16,24))
nstamp('g_gath')
sum8r(16)
bf16r(16,16)
a(f's_waitcnt lgkmcnt(0)\nv_mul_f32 v16, v16, v{MG}')
bf16r(16,16)
a(f'v_lshlrev_b32 v17, 16, v{XE}\nv_add_f32 v16, v16, v17')
bf16r(16,16)
a(f's_lshl_b32 s3, s39, 3\nv_mov_b32 v3, s3\nv_mov_b32 v2, 0')
def ln_wg(x,slot):
    a(f'v_mov_b32 v44, v{x}\nv_mul_f32 v45, v{x}, v{x}')
    wave_allreduce('v_add_f32',[44,45],[46,47])
    a(f'''ds_write_b64 v3, v[44:45] offset:{slot}
    s_waitcnt lgkmcnt(0)
    s_barrier
    ds_read_b128 v[20:23], v2 offset:{slot}
    ds_read_b128 v[24:27], v2 offset:{slot+16}
    ds_read_b128 v[28:31], v2 offset:{slot+32}
    ds_read_b128 v[32:35], v2 offset:{slot+48}
    s_waitcnt lgkmcnt(0)
    v_add_f32 v20, v20, v22
    v_add_f32 v21, v21, v23
    v_add_f32 v24, v24, v26
    v_add_f32 v25, v25, v27
    v_add_f32 v28, v28, v30
    v_add_f32 v29, v29, v31
    v_add_f32 v32, v32, v34
    v_add_f32 v33, v33, v35
    v_add_f32 v20, v20, v24
    v_add_f32 v21, v21, v25
    v_add_f32 v28, v28, v32
    v_add_f32 v29, v29, v33
    v_add_f32 v44, v20, v28
    v_add_f32 v45, v21, v29
    v_mul_f32 v44, 0x3b000000, v44
    v_mul_f32 v45, 0x3b000000, v45
    v_fma_f32 v45, -v44, v44, v45
    v_max_f32 v45, 0, v45''')
    ln_fin(44,45,46)
    a(f'v_sub_f32 v{x}, v{x}, v44')
    bf16r(x,x)
    div1(20,x,45,22,23)
    bf16r(x,20)
ln_wg(16,8192)
a(f'v_mul_f32 v16, v16, v{MG+2}')
bf16r(16,16)
a(f'v_add_f32 v16, v16, v{MG+1}')
bf16r(16,16)
ln_wg(16,8320)
nstamp('g_ln')
a(f'''v_lshlrev_b32 v1, 2, v0
ds_write_b32 v1, v16
v_lshrrev_b32 v3, 2, v0
v_lshlrev_b32 v3, 2, v3
s_waitcnt lgkmcnt(0)
s_barrier''')
for q in range(4): a(f'ds_read_b32 v{20+q}, v3 offset:{512*q}')
a('s_waitcnt lgkmcnt(0)')
for q in range(4): mul8(acc,W1+4*q,20+q,q==0)
c0,c1=halve8(acc)
for ctl in ['row_ror:8','row_ror:4']:
    a.nop(2); dpp('v_add_f32',c0,c0,c0,ctl); dpp('v_add_f32',c1,c1,c1,ctl)
a(f'''s_lshl_b32 s3, s39, 7
v_and_b32 v5, 3, v0
v_lshlrev_b32 v3, 5, v5
v_add_u32 v3, s3, v3
v_bfe_u32 v5, v0, 4, 1
v_lshl_add_u32 v3, v5, 3, v3
v_bfe_u32 v5, v0, 5, 1
v_lshl_add_u32 v3, v5, 4, v3
ds_write_b64 v3, v[{c0}:{c1}] offset:9216
s_lshr_b32 s28, s39, 2
s_lshl_b32 s28, s28, 4
v_add_u32 v3, s28, v0
v_and_b32 v3, 31, v3
v_lshlrev_b32 v3, 2, v3
ds_bpermute_b32 v45, v3, v{B1}
s_waitcnt lgkmcnt(0)
s_barrier''')
sum8_lds(9216,128,8,3)
bf16r(8,8)
a('v_lshlrev_b32 v45, 16, v45\nv_add_f32 v8, v8, v45')
bf16r(8,8)
a('''v_mul_f32 v9, v8, v8
v_mov_b32 v10, 0x3d372713
v_fma_f32 v9, v9, v10, 1.0
v_mul_f32 v9, v9, v8
v_mul_f32 v9, 0xc0135761, v9
v_exp_f32 v9, v9
s_nop 0
v_add_f32 v9, 1.0, v9
v_rcp_f32 v9, v9
s_nop 0
v_mul_f32 v8, v8, v9''')
bf16r(8,8)
a('s_nop 0')
for k in range(16): a(f'v_readlane_b32 s{80+k}, v8, {k}')
a('s_nop 1')
for d in range(16):
    a(f'v_lshlrev_b32 v44, 16, v{W2+d}\nv_and_b32 v45, 0xffff0000, v{W2+d}')
    op='v_mul_f32' if d==0 else 'v_fmac_f32'
    a(f'{op} v42, s{80+d}, v44\n{op} v43, s{80+d}, v45')
a(f'''v_and_b32 v1, 255, v0
v_lshlrev_b32 v1, 3, v1
s_cmp_lt_u32 s39, 4
s_cbranch_scc1 G_LO
ds_write_b64 v1, v[42:43] offset:10240
s_waitcnt lgkmcnt(0)
s_barrier
s_branch K_TS''')
a.label('G_LO')
a(f'''s_barrier
ds_read_b64 v[44:45], v1 offset:10240
s_lshl_b32 s3, s76, 11
s_add_u32 s3, s3, {O2P}
s_waitcnt lgkmcnt(0)
v_add_f32 v42, v42, v44
v_add_f32 v43, v43, v45
buffer_store_dwordx2 v[42:43], v1, {WS}, s3 offen {SC1}''')
nstamp('g_done')
a('s_branch K_TS')
a.label('H_GO')
a(f'''s_sub_u32 s28, s2, {H0}
v_lshrrev_b32 v4, 4, v0
v_and_b32 v5, 15, v0
v_lshlrev_b32 v1, 11, v4
v_lshl_add_u32 v1, v5, 4, v1
s_lshl_b32 s3, s28, 8
s_add_u32 s24, s3, {OP}
s_add_u32 s25, s3, {O2P}
s_add_u32 s26, s25, 65536''')
for r in list(range(16,20))+list(range(24,28)): a(f'v_mov_b32 v{r}, 0')
a('s_cmp_ge_u32 s39, 2\ns_cbranch_scc1 H_SK0')
gather([f'buffer_load_dwordx4 v[16:19], v1, {WS}, s24 offen'], range(16,20))
a.label('H_SK0')
def red4(regs,off):
    for sw in ['v_permlane16_swap_b32','v_permlane32_swap_b32']:
        for i,r in enumerate(regs): a(f'v_mov_b32 v{44+i}, v{r}')
        a.nop(1)
        for i,r in enumerate(regs): a(f'{sw} v{r}, v{44+i}')
        a.nop(1)
        for i,r in enumerate(regs): a(f'v_add_f32 v{r}, v{r}, v{44+i}')
    a(f's_lshl_b32 s3, s39, 8\nv_lshl_add_u32 v2, v5, 4, s3\nds_write_b128 v2, v[{regs[0]}:{regs[3]}] offset:{off}')
red4([16,17,18,19],0)
a(f'''v_lshlrev_b32 v6, 4, v0
s_waitcnt lgkmcnt(0)
v_mov_b32 v16, v{MG}
v_mov_b32 v17, v{MG+3}
v_lshlrev_b32 v18, 16, v{XE}
v_lshlrev_b32 v19, 16, v{B2}
ds_write_b128 v6, v[16:19] offset:4096
v_cmp_gt_u32 vcc, {NG5-32}, v4
s_and_saveexec_b64 s[34:35], vcc
s_cbranch_execz H_SK''')
gather([f'buffer_load_dwordx4 v[24:27], v1, {WS}, s26 offen'], range(24,28))
a.label('H_SK')
a('s_mov_b64 exec, s[34:35]')
gather([f'buffer_load_dwordx4 v[20:23], v1, {WS}, s25 offen'], range(20,24))
nstamp('h_gath')
for c_ in range(4): a(f'v_add_f32 v{20+c_}, v{20+c_}, v{24+c_}')
red4([20,21,22,23],2048)
a(f'''s_waitcnt lgkmcnt(0)
s_barrier
s_cmp_lg_u32 s39, 0
s_cbranch_scc1 K_TS
s_lshl_b32 s3, s28, 10
v_add_u32 v2, s3, v6
ds_read_b128 v[24:27], v2 offset:4096
v_lshlrev_b32 v1, 2, v0''')
sum8_lds(0,256,16,1)
sum8_lds(2048,256,17,1)
bf16r2(16,17,16,17,20)
a('v_mul_f32 v16, v16, v24\nv_add_f32 v17, v17, v27')
bf16r2(16,17,16,17,20)
a('v_add_f32 v16, v16, v26\nv_mul_f32 v17, v17, v25')
bf16r2(16,17,16,17,20)
srdp(S_A,13,1024)
a(f'''v_add_f32 v16, v16, v17
v_cvt_pk_bf16_f32 v16, v16, v16
v_lshlrev_b32 v1, 1, v0
s_lshl_b32 s3, s28, 7
buffer_store_short v16, v1, {SA}, s3 offen''')
if DBGT:
    srdp(S_DBG,14,256)
    a(f'''s_memrealtime s[100:101]
    s_waitcnt lgkmcnt(0)
    s_sub_u32 s100, s100, s72
    v_mov_b32 v2, s100
    s_lshl_b32 s3, s28, 2
    v_mov_b32 v3, 0
    v_cmp_eq_u32 vcc, 0, v0
    s_and_saveexec_b64 s[36:37], vcc
    buffer_store_dword v2, v3, {SD}, s3 offen offset:16''')
a.label('K_TS')
tsend(); a('s_endpgm')
a.label('AUX')
a(f'''v_subrev_u32 v0, 512, v0
v_and_b32 v11, 63, v0
v_lshlrev_b32 v11, 4, v11
s_lshl_b32 s3, s32, 8
v_lshl_add_u32 v6, v0, 1, s3
s_waitcnt lgkmcnt(0)''')
srdp(S_WS,15,WSBYTES); srdp(S_DBG,14,256); srdp(S_X,0,1024)
a(f'''buffer_load_dwordx4 v[56:59], v11, {SX}, 0 offen
buffer_load_ushort v46, v6, {SX}, 0 offen
s_cmp_lt_u32 s2, 192
s_cbranch_scc1 X_NOINIT
s_barrier
s_cmp_ge_u32 s2, 198
s_cbranch_scc1 X_NOINIT
s_barrier''')
a.label('X_NOINIT')
a('s_waitcnt vmcnt(0)')
x8=list(range(60,68)); unpack8(x8,56)
ln_stats(x8,44,45,47)
a('v_lshlrev_b32 v46, 16, v46\nv_sub_f32 v46, v46, v44')
bf16r(46,46)
div1(18,46,45,20,21)
bf16r(46,18)
a(f'''v_lshlrev_b32 v1, 2, v0
s_cmp_ge_u32 s2, 192
s_cbranch_scc1 X_B1
s_cmp_lg_u32 s39, 8
s_cbranch_scc1 X_B1''')
poll_dbg(32,6)
a.label('X_B1')
a(BAR)
a(f'''s_cmp_ge_u32 s2, 192
s_cbranch_scc1 X_A
s_cmp_lg_u32 s39, 8
s_cbranch_scc1 X_A''')
sum8_lds(0,256,8,1)
a(f'''s_mul_i32 s3, s32, 12288
s_lshl_b32 s28, s33, 8
s_add_u32 s3, s3, s28
buffer_store_dword v8, v1, {WS}, s3 offen offset:{MODP} {SC1}''')
a.label('X_A')
if not DMA0: a(BAR)
a('v_lshlrev_b32 v6, 1, v6\ns_mov_b32 s25, 12288\ns_mov_b32 s26, 24576\ns_mov_b32 s27, 36864')
gather([f'buffer_load_dword v{16+2*p+k}, v6, {WS}, {"0" if p==0 else "s%d"%(24+p)} offen offset:{MODP+k*2048}' for p in range(4) for k in range(2)], range(16,24))
a('''v_add_f32 v16, v16, v18
v_add_f32 v20, v20, v22
v_add_f32 v17, v17, v19
v_add_f32 v21, v21, v23
v_add_f32 v16, v16, v20
v_add_f32 v17, v17, v21''')
bf16r2(16,17,16,17,47)
a('v_add_f32 v17, 1.0, v17')
bf16r(17,17)
a('v_mul_f32 v18, v46, v17')
bf16r(18,18)
a('v_add_f32 v18, v18, v16')
bf16r(18,18)
a('ds_write_b32 v1, v18 offset:4096\ns_waitcnt lgkmcnt(0)')
a(BAR)
a('s_cmp_lg_u32 s39, 8\ns_cbranch_scc1 X_PI')
poll_dbg(0,64)
a('s_branch X_B3')
a.label('X_PI')
a(f'''v_mov_b32 v16, -1
v_mov_b32 v17, -1
v_mov_b32 v18, -1
v_mov_b32 v19, -1
v_and_b32 v11, 63, v0
v_lshlrev_b32 v11, 4, v11
s_lshr_b32 s3, s2, 6
s_lshl_b32 s3, s3, 19
s_and_b32 s28, s2, 63
s_lshl_b32 s28, s28, 10
s_add_u32 s3, s3, s28
s_add_u32 s3, s3, {PART}''')
for q in range(8):
    a(f'buffer_store_dwordx4 v[16:19], v11, {WS}, s3 offen {SC1}')
    if q<7: a('s_add_u32 s3, s3, 65536')
a.label('X_B3')
a(BAR)
a('s_cmp_lg_u32 s39, 8\ns_cbranch_scc1 X_Q')
sum8_lds(2048,256,8,1)
a(f'''s_lshl_b32 s3, s2, 8
s_add_u32 s3, s3, {QP}
buffer_store_dword v8, v1, {WS}, s3 offen {SC1}''')
a.label('X_Q')
if not DMA0: a(BAR)
a(f'''v_and_b32 v7, 63, v0
v_lshlrev_b32 v7, 2, v7
s_lshl_b32 s3, s30, 11
s_sub_u32 s28, s39, 8
s_lshl_b32 s28, s28, 10
s_add_u32 s3, s3, s28
s_add_u32 s3, s3, {QP}''')
gather([f'buffer_load_dword v{16+m}, v7, {WS}, s3 offen offset:{256*m}' for m in range(4)], range(16,20))
a('''v_add_f32 v16, v16, v17
v_add_f32 v18, v18, v19
v_add_f32 v16, v16, v18''')
bf16r(16,16)
a('ds_write_b32 v1, v16 offset:4608\ns_waitcnt lgkmcnt(0)')
a(BAR)
a(BAR)
a(BAR)
a(BAR)
a(f'''s_cmp_lt_u32 s2, {H0}
s_cbranch_scc1 X_MGD
s_mov_b32 s24, 4096
s_mov_b32 s25, {4096+12288}
s_mov_b32 s26, {4096+24576}
s_mov_b32 s27, {4096+36864}
v_add_u32 v6, 4096, v1''')
gather([f'buffer_load_dword v{72+16*rr+4*p+k}, v{1 if k<2 else 6}, {WS}, s{24+p} offen offset:{MODP+(k%2)*2048+512*rr}' for rr in range(4) for p in range(4) for k in range(4)], range(72,136))
for rr in range(4):
    b=72+16*rr
    for k in range(4): a(f'v_add_f32 v{b+k}, v{b+k}, v{b+4+k}\nv_add_f32 v{b+8+k}, v{b+8+k}, v{b+12+k}\nv_add_f32 v{b+k}, v{b+k}, v{b+8+k}')
    bf16r2(b,b+1,b,b+1,20); bf16r2(b+2,b+3,b+2,b+3,20)
    a(f'v_add_f32 v{b+2}, 1.0, v{b+2}')
    bf16r(b+2,b+2)
    a(f'v_lshlrev_b32 v7, 2, v1\nv_add_u32 v7, {MGL+2048*rr}, v7\nds_write_b128 v7, v[{b}:{b+3}]')
a('s_waitcnt lgkmcnt(0)')
a.label('X_MGD')
a(BAR)
a(BAR)
a(BAR)
sum8_lds(4096,512,8,1)
a(f'''s_lshl_b32 s3, s2, 9
s_add_u32 s3, s3, {CP}
buffer_store_dword v8, v1, {WS}, s3 offen {SC1}''')
a(BAR)
a(BAR)
a(f'''s_cmp_lg_u32 s39, 8
s_cbranch_scc1 X_END
v_cmp_gt_u32 vcc, 16, v0
s_and_saveexec_b64 s[36:37], vcc''')
sum8_lds(12288,64,8,1)
a(f'''s_lshr_b32 s3, s2, 5
s_lshl_b32 s3, s3, 11
s_and_b32 s28, s2, 31
s_lshl_b32 s28, s28, 6
s_add_u32 s3, s3, s28
s_add_u32 s3, s3, {OP}
buffer_store_dword v8, v1, {WS}, s3 offen {SC1}''')
a.label('X_END')
a.label('K_END'); a('s_endpgm')

KD=f'''.amdhsa_kernel {KN}
  .amdhsa_next_free_vgpr 160
  .amdhsa_next_free_sgpr 102
  .amdhsa_accum_offset 160
  .amdhsa_group_segment_fixed_size 0
  .amdhsa_kernarg_size 128
  .amdhsa_user_sgpr_count 2
  .amdhsa_user_sgpr_kernarg_segment_ptr 1
  .amdhsa_system_sgpr_workgroup_id_x 1
.end_amdhsa_kernel'''
out=[l for l in HDR if l.startswith(';') and '@launch' not in l and 'Override' not in l and 'grid=ceil' not in l]
out.append(f'; @launch grid=(256,1,1) block=(640,1,1) lds={LDS}')
out.append('.amdgcn_target "amdgcn-amd-amdhsa--gfx950"\n.text')
out+=a.L
out.append('.section .rodata,"a"\n.p2align 6\n'+KD)
dst=sys.argv[1] if len(sys.argv)>1 else 'cdna_kernels/%s.s'%NAME
open(dst,'w').write('\n'.join(out)+'\n')
print('wrote',dst,len(a.L),'lines')
```

```python
import sys, os
NAME='adaLN_cond__compressed_kv_cla__mixer_channel_mlp__decode'
HDR=open('cdna_kernels/%s.s.ref'%NAME).read().split('\n')
KN=NAME+'_kernel'
TS=os.environ.get('TS','0')=='1'
NST=os.environ.get('NST','').split(',')
SLP=os.environ.get('SLP','1')
DSL=os.environ.get('DSL','2')
SC1='sc1'
DMA0=os.environ.get('DMA0','0')=='1'
WQL=os.environ.get('WQL','0')=='1'
UVC=os.environ.get('UVC','0')
MODP=0x0
QP=0x10000
QA=0x20000
STAT=0x30000
CP=0x40000
OP=0x60000
O2P=0x70000
PART=0x100000
TSOFF=0x500000
WSBYTES=0x600000
XCH=0; RB=16384; REG=64*128; MGL=RB+8*REG; SC2=MGL+8192; LDS=SC2+2048
NG5=43; G0=213; H0=205
WQ=72; WUK=80; WUV=88; WO=96; TSV=104; VDMA=119; XE=120; B1=121; B2=122; VRED=123; MG=124; W1=128; W2=144
S_WS=4; S_DBG=8; S_X=12; S_A=16; S_B=20; S_C=96; P=40
LOG2E='0x3fb8aa3b'
WS=f's[{S_WS}:{S_WS+3}]'
SA=f's[{S_A}:{S_A+3}]'; SB=f's[{S_B}:{S_B+3}]'; SC=f's[{S_C}:{S_C+3}]'; SX=f's[{S_X}:{S_X+3}]'; SD=f's[{S_DBG}:{S_DBG+3}]'

class A:
    def __init__(s): s.L=[]
    def __call__(s,x):
        for l in x.strip('\n').split('\n'): s.L.append('    '+l.strip())
    def label(s,x): s.L.append(x+':')
    def nop(s,n):
        while n>0:
            k=min(n,16); s('s_nop %d'%(k-1)); n-=k
a=A()
def srd(d,lo,hi,nbytes):
    a(f's_mov_b32 s{d}, s{lo}\ns_mov_b32 s{d+1}, s{hi}\ns_mov_b32 s{d+2}, {nbytes}\ns_mov_b32 s{d+3}, 0x20000')
def srdp(d,i,n): srd(d,P+2*i,P+2*i+1,n)
def dpp(op,d,s0,s1,ctl): a(f'{op}_dpp v{d}, v{s0}, v{s1} {ctl} row_mask:0xf bank_mask:0xf')
def wave_allreduce(op, regs, tmps):
    for ctl in ['row_ror:8','row_ror:4','row_ror:2','row_ror:1']:
        a.nop(2 if len(regs)<3 else 1)
        for r in regs: dpp(op,r,r,r,ctl)
    for sw in ['v_permlane16_swap_b32','v_permlane32_swap_b32']:
        for r,t in zip(regs,tmps): a(f'v_mov_b32 v{t}, v{r}')
        a.nop(2)
        for r,t in zip(regs,tmps): a(f'{sw} v{r}, v{t}')
        a.nop(1)
        for r,t in zip(regs,tmps): a(f'{op} v{r}, v{r}, v{t}')
def bf16r(d,s_): a(f'v_cvt_pk_bf16_f32 v{d}, v{s_}, v{s_}\nv_lshlrev_b32 v{d}, 16, v{d}')
def bf16r2(d0,d1,s0,s1,t): a(f'v_cvt_pk_bf16_f32 v{t}, v{s0}, v{s1}\nv_lshlrev_b32 v{d0}, 16, v{t}\nv_and_b32 v{d1}, 0xffff0000, v{t}')
def halve8(acc):
    a.nop(2)
    for i in range(4): a(f'v_permlane32_swap_b32 v{acc[i]}, v{acc[i+4]}')
    a.nop(1)
    for i in range(4): a(f'v_add_f32 v{acc[i]}, v{acc[i]}, v{acc[i+4]}')
    a.nop(1)
    for i in range(2): a(f'v_permlane16_swap_b32 v{acc[i]}, v{acc[i+2]}')
    a.nop(1)
    for i in range(2): a(f'v_add_f32 v{acc[i]}, v{acc[i]}, v{acc[i+2]}')
    return acc[0],acc[1]
def halve16(acc, rors):
    a.nop(2)
    for i in range(8): a(f'v_permlane32_swap_b32 v{acc[i]}, v{acc[i+8]}')
    a.nop(1)
    for i in range(8): a(f'v_add_f32 v{acc[i]}, v{acc[i]}, v{acc[i+8]}')
    a.nop(1)
    for i in range(4): a(f'v_permlane16_swap_b32 v{acc[i]}, v{acc[i+4]}')
    a.nop(1)
    for i in range(4): a(f'v_add_f32 v{acc[i]}, v{acc[i]}, v{acc[i+4]}')
    for ctl in rors:
        for i in range(4): dpp('v_add_f32',acc[i],acc[i],acc[i],ctl)
    return acc[:4]
def mul8(acc,w,sc,first,t0=42,t1=43):
    for k in range(4):
        a(f'v_lshlrev_b32 v{t0}, 16, v{w+k}\nv_and_b32 v{t1}, 0xffff0000, v{w+k}')
        op='v_mul_f32' if first else 'v_fmac_f32'
        a(f'{op} v{acc[2*k]}, v{sc}, v{t0}\n{op} v{acc[2*k+1]}, v{sc}, v{t1}')
def mulN(acc,w,n,sc,t0=42,t1=43):
    for k in range(n):
        a(f'v_lshlrev_b32 v{t0}, 16, v{w+k}\nv_and_b32 v{t1}, 0xffff0000, v{w+k}\nv_mul_f32 v{acc[2*k]}, v{sc}, v{t0}\nv_mul_f32 v{acc[2*k+1]}, v{sc}, v{t1}')
def ln_fin(vm,vs,t0):
    bf16r2(vm,vs,vm,vs,t0)
    a(f'v_add_f32 v{vs}, 0x3727c5ac, v{vs}')
    bf16r(vs,vs)
    a(f'v_sqrt_f32 v{vs}, v{vs}\ns_nop 0')
    bf16r(vs,vs)
def ln_stats(x8, vm, vs, t0):
    a(f'v_add_f32 v{vm}, v{x8[0]}, v{x8[1]}')
    for k in range(2,8): a(f'v_add_f32 v{vm}, v{vm}, v{x8[k]}')
    wave_allreduce('v_add_f32',[vm],[t0])
    a(f'v_mul_f32 v{vm}, 0x3b000000, v{vm}\nv_mov_b32 v{vs}, 0')
    for k in range(8): a(f'v_sub_f32 v{t0}, v{x8[k]}, v{vm}\nv_fmac_f32 v{vs}, v{t0}, v{t0}')
    wave_allreduce('v_add_f32',[vs],[t0])
    a(f'v_mul_f32 v{vs}, 0x3b000000, v{vs}')
    ln_fin(vm,vs,t0)
def div1(d,n,den,t0,t1):
    a(f'''v_rcp_f32 v{t0}, v{den}
    s_nop 0
    v_mul_f32 v{t1}, v{n}, v{t0}
    v_fma_f32 v{d}, -v{t1}, v{den}, v{n}
    v_fma_f32 v{d}, v{d}, v{t0}, v{t1}''')
def unpack8(dst, src):
    for k in range(4): a(f'v_and_b32 v{dst[2*k+1]}, 0xffff0000, v{src+k}\nv_lshlrev_b32 v{dst[2*k]}, 16, v{src+k}')
def sum8r(b):
    a(f'''v_add_f32 v{b}, v{b}, v{b+1}
    v_add_f32 v{b+2}, v{b+2}, v{b+3}
    v_add_f32 v{b+4}, v{b+4}, v{b+5}
    v_add_f32 v{b+6}, v{b+6}, v{b+7}
    v_add_f32 v{b}, v{b}, v{b+2}
    v_add_f32 v{b+4}, v{b+4}, v{b+6}
    v_add_f32 v{b}, v{b}, v{b+4}''')
def sum8_lds(off,stride,dst,addr):
    for w in range(8): a(f'ds_read_b32 v{8+w}, v{addr} offset:{off+w*stride}')
    a('s_waitcnt lgkmcnt(0)')
    sum8r(8)
    if dst!=8: a(f'v_mov_b32 v{dst}, v8')
lid=[0]
def L(p):
    lid[0]+=1; return f'{p}{lid[0]}'
def nstamp(nm):
    if TS and nm in NST:
        i=1+NST.index(nm)
        a(f's_memrealtime s[100:101]\ns_waitcnt lgkmcnt(0)\nv_mov_b32 v{TSV+2*i}, s100\nv_mov_b32 v{TSV+1+2*i}, s101')
def tsend():
    if not TS: return
    a(f'''s_waitcnt vmcnt(0)
    s_memrealtime s[100:101]
    s_mov_b64 exec, -1
    v_cmp_eq_u32 vcc, 0, v0
    s_and_saveexec_b64 s[36:37], vcc
    s_waitcnt lgkmcnt(0)
    v_mov_b32 v5, 0
    s_lshl_b32 s3, s2, 6
    s_add_u32 s3, s3, {TSOFF}
    v_mov_b32 v0, s100
    v_mov_b32 v1, s101
    v_mov_b32 v2, 0
    v_mov_b32 v3, 0
    buffer_store_dwordx4 v[{TSV}:{TSV+3}], v5, s[4:7], s3 offen
    buffer_store_dwordx4 v[{TSV+4}:{TSV+7}], v5, s[4:7], s3 offen offset:16
    buffer_store_dwordx4 v[{TSV+8}:{TSV+11}], v5, s[4:7], s3 offen offset:32
    buffer_store_dwordx4 v[0:3], v5, s[4:7], s3 offen offset:48''')
def gather(loads, regs):
    l0=L('GA'); l1=L('GD')
    a('s_mov_b32 s38, 0')
    a.label(l0)
    for x in loads: a(x+' '+SC1)
    a('s_add_u32 s38, s38, 1\ns_waitcnt vmcnt(0)')
    r=list(regs)
    if len(r)==1: a(f'v_mov_b32 v70, v{r[0]}'); i=1
    elif len(r)==2: a(f'v_max_u32 v70, v{r[0]}, v{r[1]}'); i=2
    else: a(f'v_max3_u32 v70, v{r[0]}, v{r[1]}, v{r[2]}'); i=3
    while i<len(r):
        if i+1<len(r): a(f'v_max3_u32 v70, v70, v{r[i]}, v{r[i+1]}'); i+=2
        else: a(f'v_max_u32 v70, v70, v{r[i]}'); i+=1
    a(f'''v_cmp_eq_u32 vcc, -1, v70
    s_cmp_gt_u32 s38, 0x40000
    s_cbranch_scc1 {l1}
    s_nop 2
    s_cmp_eq_u64 vcc, 0
    s_cbranch_scc1 {l1}
    s_sleep {SLP}
    s_branch {l0}''')
    a.label(l1)
def poll_dbg(word,val):
    l0=L('WA'); l1=L('WD')
    a('s_mov_b32 s38, 0\nv_mov_b32 v71, 0')
    a.label(l0)
    a(f'''buffer_load_dword v70, v71, {SD}, 0 offen offset:{4*word} {SC1}
    s_add_u32 s38, s38, 1
    s_waitcnt vmcnt(0)
    v_readfirstlane_b32 s3, v70
    s_cmp_gt_u32 s38, 0x40000
    s_cbranch_scc1 {l1}
    s_cmp_ge_u32 s3, {val}
    s_cbranch_scc1 {l1}
    s_sleep {DSL}
    s_branch {l0}''')
    a.label(l1)
def red8_w(acc, off):
    c0,c1=halve8(acc)
    a.nop(2)
    dpp('v_add_f32',c0,c0,c0,'row_ror:8'); dpp('v_add_f32',c1,c1,c1,'row_ror:8')
    a(f'ds_write_b64 v{VRED}, v[{c0}:{c1}] offset:{off}\ns_waitcnt lgkmcnt(0)')
BAR='s_barrier'

a.L.append(f'.globl {KN}\n.p2align 8\n.type {KN},@function\n{KN}:')
if TS:
    a(f's_memrealtime s[100:101]\ns_waitcnt lgkmcnt(0)\nv_mov_b32 v{TSV}, s100\nv_mov_b32 v{TSV+1}, s101')
    for i in range(TSV+2,TSV+12): a(f'v_mov_b32 v{i}, 0')
DBGT=os.environ.get('DBGT','0')=='1'
if DBGT: a('s_memrealtime s[72:73]')
a(f'''s_cmp_ge_u32 s2, 256
s_cbranch_scc1 K_END
s_load_dwordx16 s[40:55], s[0:1], 0
s_load_dwordx16 s[56:71], s[0:1], 64
v_lshrrev_b32 v1, 6, v0
v_lshrrev_b32 v4, 3, v0
v_readfirstlane_b32 s39, v1
v_and_b32 v5, 7, v0
s_lshr_b32 s30, s2, 3
s_and_b32 s31, s2, 7
s_and_b32 s32, s2, 3
s_lshr_b32 s33, s2, 2
s_cmp_ge_u32 s39, 8
s_cbranch_scc1 AUX''')
a(f'''s_lshl_b32 s3, s32, 7
v_add_u32 v6, s3, v4
v_lshlrev_b32 v7, 1, v6
v_mul_u32_u24 v8, 0x1800, v6
v_lshl_add_u32 v8, v5, 4, v8
s_lshl_b32 s3, s33, 7
v_add_u32 v8, s3, v8
s_mov_b32 s34, 393216
v_lshlrev_b32 v9, 13, v6
v_lshl_add_u32 v9, v5, 4, v9
s_lshl_b32 s3, s30, 8
s_bfe_u32 s28, s2, 0x10002
s_lshl_b32 s28, s28, 7
s_add_u32 s3, s3, s28
v_add_u32 v9, s3, v9
s_mov_b32 s35, 0x80000
v_lshlrev_b32 v10, 13, v4
v_lshl_add_u32 v10, v5, 5, v10
s_lshl_b32 s3, s31, 19
s_lshl_b32 s28, s30, 8
s_add_u32 s74, s3, s28
v_lshlrev_b32 v12, 1, v0
s_lshl_b32 s3, s39, 8
v_lshlrev_b32 v{VRED}, 5, v5
v_add_u32 v{VRED}, s3, v{VRED}
v_bfe_u32 v2, v0, 4, 1
v_lshl_add_u32 v{VRED}, v2, 3, v{VRED}
v_bfe_u32 v2, v0, 5, 1
v_lshl_add_u32 v{VRED}, v2, 4, v{VRED}
s_and_b32 s77, s2, 63
s_lshr_b32 s78, s2, 6
v_and_b32 v1, 63, v0
v_lshrrev_b32 v2, 3, v1
v_and_b32 v3, 7, v1
v_xor_b32 v3, v3, v2
v_lshlrev_b32 v3, 4, v3
v_lshl_add_u32 v{VDMA}, v2, 10, v3
s_lshl_b32 s3, s39, 7
s_lshl_b32 s29, s77, 16
s_add_u32 s29, s29, s3
s_mul_i32 s79, s39, {REG}
s_add_u32 s79, s79, {RB}
s_sub_u32 s76, s2, {G0}
s_waitcnt lgkmcnt(0)''')
srdp(S_WS,15,WSBYTES); srdp(S_X,0,1024); srdp(S_A,12,3145728); srdp(S_B,11,1024)
a('s_cmp_lt_u32 s2, 192\ns_cbranch_scc1 C_MLD\ns_cmp_ge_u32 s2, 208\ns_cbranch_scc1 C_NOM')
srdp(S_DBG,14,256)
a(f'''s_sub_u32 s28, s2, 192
v_lshlrev_b32 v1, 4, v0
v_mov_b32 v16, -1
v_mov_b32 v17, -1
v_mov_b32 v18, -1
v_mov_b32 v19, -1
v_mov_b32 v20, 1
v_mov_b32 v21, 0
s_lshl_b32 s3, s28, 13
s_cmp_ge_u32 s28, 6
s_cbranch_scc1 C_INIT2
buffer_store_dwordx4 v[16:19], v1, {WS}, s3 offen {SC1}
s_waitcnt vmcnt(0)''')
nstamp('i_ack')
a(f'''s_barrier
v_cmp_eq_u32 vcc, 0, v0
s_and_saveexec_b64 s[36:37], vcc
s_lshl_b32 s24, s28, 2
buffer_store_dword v20, v21, {SD}, s24 offen offset:128 {SC1}
s_mov_b64 exec, s[36:37]''')
if TS and 'i_at' in NST: a('s_waitcnt vmcnt(0)')
nstamp('i_at')
a.label('C_INIT2')
a(f'''s_lshl_b32 s3, s28, 15
s_add_u32 s3, s3, 0x10000
buffer_store_dwordx4 v[16:19], v1, {WS}, s3 offen {SC1}
s_add_u32 s3, s3, 8192
buffer_store_dwordx4 v[16:19], v1, {WS}, s3 offen {SC1}
s_add_u32 s3, s3, 8192
buffer_store_dwordx4 v[16:19], v1, {WS}, s3 offen {SC1}
s_add_u32 s3, s3, 8192
buffer_store_dwordx4 v[16:19], v1, {WS}, s3 offen {SC1}
s_waitcnt vmcnt(0)
s_barrier
v_cmp_eq_u32 vcc, 0, v0
s_and_saveexec_b64 s[36:37], vcc
buffer_atomic_add v20, v21, {SD}, 0 offen
s_mov_b64 exec, s[36:37]
s_branch C_NOM''')
a.label('C_MLD')
a(f'''buffer_load_ushort v24, v7, {SB}, 0 offen
buffer_load_ushort v25, v7, {SB}, 0 offen offset:128
buffer_load_dwordx4 v[32:35], v8, {SA}, 0 offen
buffer_load_dwordx4 v[36:39], v8, {SA}, s34 offen''')
a.label('C_NOM')
srdp(S_A,2,4194304); srdp(S_B,3,4194304); srdp(S_C,1,4194304)
def wqload():
    srdp(S_A,2,4194304); srdp(S_B,3,4194304)
    a(f'''buffer_load_dwordx4 v[{WQ}:{WQ+3}], v9, {SA}, 0 offen
    buffer_load_dwordx4 v[{WQ+4}:{WQ+7}], v9, {SA}, s35 offen
    buffer_load_dwordx4 v[{WUK}:{WUK+3}], v10, {SB}, s74 offen
    buffer_load_dwordx4 v[{WUK+4}:{WUK+7}], v10, {SB}, s74 offen offset:16''')
if WQL: a('s_cmp_lt_u32 s2, 192\ns_cbranch_scc1 C_NOWQ')
wqload()
if WQL: a.label('C_NOWQ')
a(f'buffer_load_ushort v{XE}, v12, {SX}, 0 offen')
srdp(S_A,10,1024)
a(f'buffer_load_ushort v{B2}, v12, {SA}, 0 offen')
def dma(lo,hi):
    for i in range(lo,hi):
        a(f's_add_u32 m0, s79, {1024*i}\ns_add_u32 s3, s29, {8192*i}\nbuffer_load_dwordx4 v{VDMA}, {SC}, s3 offen lds')
def stage_uv():
    srdp(S_A,4,4194304); srdp(S_B,5,4194304)
    a(f'''v_lshrrev_b32 v4, 3, v0
    v_and_b32 v5, 7, v0
    v_lshlrev_b32 v10, 13, v4
    v_lshl_add_u32 v10, v5, 5, v10
    buffer_load_dwordx4 v[{WUV}:{WUV+3}], v10, {SA}, s74 offen
    buffer_load_dwordx4 v[{WUV+4}:{WUV+7}], v10, {SA}, s74 offen offset:16''')
def stage_o():
    a(f'''s_lshr_b32 s3, s2, 5
    s_lshl_b32 s3, s3, 19
    s_and_b32 s28, s2, 7
    s_lshl_b32 s28, s28, 7
    s_add_u32 s3, s3, s28
    s_bfe_u32 s28, s2, 0x20003
    s_lshl_b32 s28, s28, 5
    s_add_u32 s3, s3, s28
    v_lshrrev_b32 v11, 1, v0
    v_lshlrev_b32 v11, 10, v11
    v_and_b32 v15, 1, v0
    v_lshl_add_u32 v11, v15, 4, v11
    s_add_u32 s28, s3, 0x40000
    buffer_load_dwordx4 v[{WO}:{WO+3}], v11, {SB}, s3 offen
    buffer_load_dwordx4 v[{WO+4}:{WO+7}], v11, {SB}, s28 offen''')
def gload1():
    srdp(S_A,7,512*2752)
    a(f'''v_lshrrev_b32 v6, 2, v0
    v_mul_u32_u24 v6, 2752, v6
    v_and_b32 v15, 3, v0
    v_lshl_add_u32 v6, v15, 4, v6
    s_lshl_b32 s28, s76, 6''')
    for q in range(4):
        a(f's_add_u32 s3, s28, {2752*128*q}\nbuffer_load_dwordx4 v[{W1+4*q}:{W1+4*q+3}], v6, {SA}, s3 offen')
    srdp(S_A,8,2752)
    a(f'''v_and_b32 v6, 31, v0
    v_lshlrev_b32 v6, 1, v6
    buffer_load_ushort v{B1}, v6, {SA}, s28 offen''')
def gload2():
    srdp(S_A,9,1376*1024)
    a(f'''v_and_b32 v6, 255, v0
    v_lshlrev_b32 v6, 2, v6
    s_lshl_b32 s3, s76, 15
    s_lshr_b32 s28, s39, 2
    s_lshl_b32 s28, s28, 14
    s_add_u32 s3, s3, s28''')
    for d in range(16):
        if d%4==0 and d>0: a('s_add_u32 s3, s3, 4096')
        a(f'buffer_load_dword v{W2+d}, v6, {SA}, s3 offen offset:{1024*(d%4)}')
G2=os.environ.get('G2','d')
ND=8 if DMA0 else 0
if DMA0: dma(0,8)
a(f's_cmp_lt_u32 s2, {G0}\ns_cbranch_scc1 C_NOG')
gload1()
if G2=='t0': gload2()
a(f's_waitcnt vmcnt({(23 if G2=="t0" else 7)+ND})')
a.label('C_NOG')
a('s_cmp_ge_u32 s2, 192\ns_cbranch_scc1 C_M_DONE\ns_waitcnt vmcnt(%d)'%(8+ND-(4 if WQL else 0)))
for i in range(2): a(f'v_lshlrev_b32 v{24+i}, 16, v{24+i}\nv_mul_f32 v{28+i}, 0xbfb8aa3b, v{24+i}')
for i in range(2): a(f'v_exp_f32 v{28+i}, v{28+i}')
a('s_nop 0')
for i in range(2): a(f'v_add_f32 v{28+i}, 1.0, v{28+i}')
for i in range(2): a(f'v_rcp_f32 v{28+i}, v{28+i}')
a('s_nop 0')
for i in range(2): a(f'v_mul_f32 v{24+i}, v{24+i}, v{28+i}')
bf16r2(24,25,24,25,28)
acc=list(range(48,56))
a(f's_waitcnt vmcnt({6+ND-(4 if WQL else 0)})')
mul8(acc,32,24,True); mul8(acc,36,25,False)
red8_w(acc,0)
a.label('C_M_DONE')
nstamp('m_pre')
a(BAR)
nstamp('m_done')
if not DMA0:
    a(BAR)
    if WQL:
        a('s_cmp_ge_u32 s2, 192\ns_cbranch_scc1 C_NOWQ2')
        wqload()
        a('s_nop 0')
        a.label('C_NOWQ2')
    dma(0,4)
a(f's_cmp_ge_u32 s2, {G0}\ns_cbranch_scc1 CW1\ns_waitcnt vmcnt({12 if DMA0 else (6 if WQL else 8)})')
a.label('CW1')
a('v_lshlrev_b32 v3, 2, v4')
a(BAR)
nstamp('a_gath')
a('ds_read_b32 v40, v3 offset:4096\nds_read_b32 v41, v3 offset:4352\ns_waitcnt lgkmcnt(0)')
mul8(acc,WQ,40,True); mul8(acc,WQ+4,41,False)
red8_w(acc,2048)
a(BAR)
nstamp('a_done')
if not DMA0:
    a(BAR)
    dma(4,8)
a(f's_cmp_ge_u32 s2, {G0}\ns_cbranch_scc1 CW2\ns_waitcnt vmcnt({8 if WQL else 10})')
a.label('CW2')
a('v_lshlrev_b32 v1, 6, v5')
a(BAR)
nstamp('b_gath')
for q in range(4): a(f'ds_read_b128 v[{16+4*q}:{19+4*q}], v1 offset:{4608+16*q}')
a('s_waitcnt lgkmcnt(0)')
for k in range(8):
    a(f'v_lshlrev_b32 v42, 16, v{WUK+k}\nv_and_b32 v43, 0xffff0000, v{WUK+k}')
    if k==0: a('v_mul_f32 v48, v16, v42\nv_mul_f32 v49, v17, v43')
    else: a(f'v_fmac_f32 v48, v{16+2*k}, v42\nv_fmac_f32 v49, v{17+2*k}, v43')
a('v_add_f32 v48, v48, v49')
for ctl in ['quad_perm:[1,0,3,2]','quad_perm:[2,3,0,1]','row_half_mirror']:
    a.nop(2); dpp('v_add_f32',48,48,48,ctl)
a(f'''v_cvt_pk_bf16_f32 v49, v48, v48
v_and_b32 v50, 0xffff0000, v49
v_sub_f32 v48, v48, v50
v_cvt_pk_bf16_f32 v48, v48, v48
v_and_b32 v49, 0xffff, v49
v_lshl_or_b32 v48, v48, 16, v49
v_lshlrev_b32 v1, 2, v4
s_lshl_b32 s3, s2, 8
s_add_u32 s3, s3, {QA}
v_cmp_eq_u32 vcc, 0, v5
s_and_saveexec_b64 s[36:37], vcc
buffer_store_dword v48, v1, {WS}, s3 offen {SC1}
s_mov_b64 exec, s[36:37]''')
a(BAR)
nstamp('b_done')
if UVC=='0': stage_uv()
a(f'''v_and_b32 v1, 63, v0
v_lshrrev_b32 v2, 4, v1
v_and_b32 v3, 15, v1
v_min_u32 v6, 7, v3
v_lshlrev_b32 v6, 11, v6
v_lshl_add_u32 v6, v2, 5, v6
s_lshl_b32 s24, s78, 14
s_lshl_b32 s26, s39, 8
s_add_u32 s24, s24, s26
s_add_u32 s24, s24, {QA}
v_and_b32 v7, 7, v3
v_xor_b32 v7, v7, v2
v_lshlrev_b32 v7, 4, v7
v_lshl_add_u32 v7, v3, 7, v7
v_add_u32 v7, s79, v7
v_xor_b32 v8, 64, v7
v_and_b32 v9, 7, v3
v_lshl_add_u32 v11, v2, 3, v9
v_lshlrev_b32 v11, 4, v11
s_lshl_b32 s3, s39, 11
v_add_u32 v12, s3, v11
s_mov_b32 s25, 0x05040100
s_mov_b32 s26, 0x07060302''')
D1=56
for r in range(16): a(f'v_mov_b32 v{D1+r}, 0')
gather([f'buffer_load_dwordx4 v[{16+4*q}:{19+4*q}], v6, {WS}, s24 offen offset:{(q>>1)*128+(q&1)*16}' for q in range(4)], range(16,32))
nstamp('c_gath')
a('v_mov_b32 v70, 0\nv_mov_b32 v71, 0\nv_mov_b32 v14, v11')
if UVC=='1': stage_uv(); stage_o()
if UVC=='2': stage_uv()
a('v_mov_b32 v11, v14')
for s_ in range(2):
    for k in range(4):
        x0=16+8*s_+2*k
        a(f'v_perm_b32 v{32+4*s_+k}, v{x0+1}, v{x0}, s25\nv_perm_b32 v{40+4*s_+k}, v{x0+1}, v{x0}, s26')
for T in range(4):
    base=16+8*(T&1)
    a(f'ds_read_b128 v[{base}:{base+3}], v7 offset:{2048*T}\nds_read_b128 v[{base+4}:{base+7}], v8 offset:{2048*T}')
    for s_ in range(2):
        a(f's_waitcnt lgkmcnt({1-s_})')
        a(f'v_mfma_f32_16x16x32_bf16 v[{D1+4*T}:{D1+4*T+3}], v[{base+4*s_}:{base+4*s_+3}], v[{32+4*s_}:{35+4*s_}], v[{D1+4*T}:{D1+4*T+3}]')
        a(f'v_mfma_f32_16x16x32_bf16 v[{D1+4*T}:{D1+4*T+3}], v[{base+4*s_}:{base+4*s_+3}], v[{40+4*s_}:{43+4*s_}], v[{D1+4*T}:{D1+4*T+3}]')
a('v_cmp_gt_u32 vcc, 8, v3\ns_and_saveexec_b64 s[36:37], vcc')
a.nop(7)
for T in range(4): a(f'ds_write_b128 v12, v[{D1+4*T}:{D1+4*T+3}] offset:{XCH+512*T}')
a('s_mov_b64 exec, s[36:37]\ns_waitcnt lgkmcnt(0)')
a(BAR)
nstamp('c_g1')
P0=16
a(f'''s_lshr_b32 s3, s39, 1
s_lshl_b32 s3, s3, 9
s_and_b32 s28, s39, 1
s_lshl_b32 s28, s28, 3
s_add_u32 s3, s3, s28
v_add_u32 v12, s3, v11''')
for w in range(8): a(f'ds_read_b64 v[{16+2*w}:{17+2*w}], v12 offset:{XCH+w*2048}')
a(f'v_add_u32 v12, {SC2}, v12\nv_add_u32 v11, {SC2}, v11\ns_waitcnt lgkmcnt(0)')
for k in range(2):
    a(f'''v_add_f32 v{16+k}, v{16+k}, v{18+k}
    v_add_f32 v{20+k}, v{20+k}, v{22+k}
    v_add_f32 v{24+k}, v{24+k}, v{26+k}
    v_add_f32 v{28+k}, v{28+k}, v{30+k}
    v_add_f32 v{16+k}, v{16+k}, v{20+k}
    v_add_f32 v{24+k}, v{24+k}, v{28+k}
    v_add_f32 v{16+k}, v{16+k}, v{24+k}''')
bf16r2(16,17,16,17,18)
a('v_mul_f32 v16, 0x3db504f3, v16\nv_mul_f32 v17, 0x3db504f3, v17')
bf16r2(16,17,16,17,18)
a('ds_write_b64 v12, v[16:17]\ns_waitcnt lgkmcnt(0)')
a(BAR)
for T in range(4): a(f'ds_read_b128 v[{16+4*T}:{19+4*T}], v11 offset:{512*T}')
a('s_waitcnt lgkmcnt(0)')
nstamp('c_x')
a(f'v_max_f32 v32, v{P0}, v{P0+1}')
for r in range(2,16,2): a(f'v_max3_f32 v32, v32, v{P0+r}, v{P0+r+1}')
for sw in ['v_permlane16_swap_b32','v_permlane32_swap_b32']:
    a(f'v_mov_b32 v33, v32\ns_nop 1\n{sw} v32, v33\ns_nop 1\nv_max_f32 v32, v32, v33')
a(f's_mov_b32 s3, {LOG2E}\nv_mul_f32 v33, s3, v32')
for r in range(16): a(f'v_fma_f32 v{P0+r}, v{P0+r}, s3, -v33')
for r in range(16): a(f'v_exp_f32 v{P0+r}, v{P0+r}')
a(f'''v_lshrrev_b32 v7, 2, v3
v_lshl_add_u32 v7, v2, 2, v7
v_and_b32 v8, 7, v7
v_bfe_u32 v9, v1, 1, 1
v_xor_b32 v8, v8, v9
v_lshlrev_b32 v8, 4, v8
v_lshl_add_u32 v8, v7, 7, v8
v_and_b32 v9, 1, v1
v_lshl_add_u32 v8, v9, 3, v8
v_add_u32 v8, s79, v8''')
for kk in range(2):
    for hh in range(2):
        T=2*kk+hh
        a(f'v_cvt_pk_bf16_f32 v{40+4*kk+2*hh}, v{P0+4*T}, v{P0+4*T+1}\nv_cvt_pk_bf16_f32 v{41+4*kk+2*hh}, v{P0+4*T+2}, v{P0+4*T+3}')
nstamp('c_sm')
D2=56
for r in range(16): a(f'v_mov_b32 v{D2+r}, 0')
FRG=[72,76,80,84,48,52,16,20]
def rdt(t):
    a(f'v_xor_b32 v13, {t<<5}, v8')
    for kk in range(2):
        f=FRG[t*2+kk]
        a(f'ds_read_b64_tr_b16 v[{f}:{f+1}], v13 offset:{2048*(2*kk)}\nds_read_b64_tr_b16 v[{f+2}:{f+3}], v13 offset:{2048*(2*kk+1)}')
rdt(0); rdt(1); rdt(2)
a(f'v_add_f32 v34, v{P0}, v{P0+1}')
for r in range(2,16): a(f'v_add_f32 v34, v34, v{P0+r}')
rdt(3)
for sw in ['v_permlane16_swap_b32','v_permlane32_swap_b32']:
    a(f'v_mov_b32 v33, v34\ns_nop 1\n{sw} v34, v33\ns_nop 1\nv_add_f32 v34, v34, v33')
for t in range(4):
    for kk in range(2):
        f=FRG[t*2+kk]
        a(f's_waitcnt lgkmcnt({14-2*(t*2+kk)})')
        a(f'v_mfma_f32_16x16x32_bf16 v[{D2+4*t}:{D2+4*t+3}], v[{f}:{f+3}], v[{40+4*kk}:{43+4*kk}], v[{D2+4*t}:{D2+4*t+3}]')
nstamp('c_g2')
a(f'''v_lshlrev_b32 v10, 7, v3
v_lshl_add_u32 v10, v2, 3, v10
v_add_u32 v10, s79, v10
v_lshlrev_b32 v11, 4, v1
v_add_u32 v11, s79, v11
v_lshrrev_b32 v12, 3, v1
v_lshlrev_b32 v12, 16, v12
v_and_b32 v13, 7, v1
v_lshl_add_u32 v12, v13, 4, v12
s_lshl_b32 s24, s78, 19
s_lshl_b32 s26, s77, 10
s_add_u32 s24, s24, s26
s_lshl_b32 s26, s39, 7
s_add_u32 s24, s24, s26
s_add_u32 s24, s24, {PART}
s_lshl_b32 s25, s78, 12
s_lshl_b32 s26, s77, 3
s_add_u32 s25, s25, s26
s_add_u32 s25, s25, {STAT}
v_lshlrev_b32 v9, 9, v3
v_mov_b32 v35, v34
v_mov_b32 v34, v32
v_cmp_gt_u32 vcc, 8, v3
s_and_saveexec_b64 s[36:37], vcc''')
for t in range(4):
    a(f'v_cvt_pk_bf16_f32 v{16+2*t}, v{D2+4*t}, v{D2+4*t+1}\nv_cvt_pk_bf16_f32 v{17+2*t}, v{D2+4*t+2}, v{D2+4*t+3}')
    a(f'ds_write_b64 v10, v[{16+2*t}:{17+2*t}] offset:{32*t}')
a(f'''s_mov_b64 exec, s[36:37]
s_waitcnt lgkmcnt(0)
ds_read_b128 v[16:19], v11
s_waitcnt lgkmcnt(0)
buffer_store_dwordx4 v[16:19], v12, {WS}, s24 offen {SC1}
v_cmp_gt_u32 vcc, 8, v0
s_and_saveexec_b64 s[36:37], vcc
buffer_store_dwordx2 v[34:35], v9, {WS}, s25 offen {SC1}
s_mov_b64 exec, s[36:37]''')
nstamp('c_st')
a(BAR)
nstamp('c_done')
if UVC=='0': stage_o()
a(f'''v_lshrrev_b32 v4, 3, v0
v_and_b32 v5, 7, v0
v_lshlrev_b32 v6, 10, v4
v_lshl_add_u32 v6, v5, 4, v6
s_lshl_b32 s24, s30, 16
s_lshl_b32 s26, s31, 7
s_add_u32 s24, s24, s26
s_add_u32 s24, s24, {PART}
v_and_b32 v1, 63, v0
v_lshlrev_b32 v7, 3, v1
s_lshl_b32 s25, s30, 9
s_add_u32 s25, s25, {STAT}''')
gather([f'buffer_load_dwordx2 v[40:41], v7, {WS}, s25 offen', f'buffer_load_dwordx4 v[16:19], v6, {WS}, s24 offen'], [40,41,16,17,18,19])
nstamp('d_gath')
if G2=='d':
    a(f's_cmp_lt_u32 s2, {G0}\ns_cbranch_scc1 C_NOG2')
    gload2()
    a.label('C_NOG2')
if UVC=='2': stage_o()
a('v_mov_b32 v42, v40')
wave_allreduce('v_max_f32',[42],[43])
a(f'''v_sub_f32 v40, v40, v42
v_mul_f32 v40, {LOG2E}, v40
v_exp_f32 v40, v40
s_nop 0
v_mul_f32 v41, v41, v40''')
wave_allreduce('v_add_f32',[41],[43])
a('''v_rcp_f32 v41, v41
v_lshlrev_b32 v42, 2, v4
v_mul_f32 v40, v40, v41
s_nop 0
ds_bpermute_b32 v40, v42, v40
s_waitcnt lgkmcnt(0)''')
mul8(acc,16,40,True)
red8_w(acc,0)
a('v_lshlrev_b32 v3, 2, v4')
a(BAR)
sum8_lds(0,256,40,3)
acc16=list(range(16,32))
mulN(acc16,WUV,8,40)
halve16(acc16,['row_ror:8'])
a(f'''s_lshl_b32 s3, s39, 9
v_lshlrev_b32 v1, 6, v5
v_add_u32 v1, s3, v1
v_bfe_u32 v2, v0, 4, 2
v_lshl_add_u32 v1, v2, 4, v1
ds_write_b128 v1, v[16:19] offset:4096
s_waitcnt lgkmcnt(0)''')
a(BAR)
nstamp('d_done')
a(f'''v_lshrrev_b32 v1, 7, v0
v_lshlrev_b32 v1, 12, v1
v_and_b32 v2, 127, v0
v_lshl_add_u32 v1, v2, 2, v1
s_lshr_b32 s3, s2, 5
s_lshl_b32 s3, s3, 14
s_add_u32 s3, s3, {CP}''')
gather([f'buffer_load_dword v{16+j}, v1, {WS}, s3 offen offset:{512*j}' for j in range(8)], range(16,24))
nstamp('e_gath')
if G2=='e':
    a(f's_cmp_lt_u32 s2, {G0}\ns_cbranch_scc1 C_NOG2')
    gload2()
    a.label('C_NOG2')
sum8r(16)
bf16r(16,16)
a(f'''v_lshlrev_b32 v1, 2, v0
ds_write_b32 v1, v16 offset:8192
v_lshrrev_b32 v3, 1, v0
v_lshlrev_b32 v3, 2, v3
s_waitcnt lgkmcnt(0)''')
a(BAR)
a('ds_read_b32 v40, v3 offset:8192\nds_read_b32 v41, v3 offset:9216\ns_waitcnt lgkmcnt(0)')
mul8(acc,WO,40,True); mul8(acc,WO+4,41,False)
c0,c1=halve8(acc)
for ctl in ['row_ror:8','row_ror:4','row_ror:2']:
    a.nop(2); dpp('v_add_f32',c0,c0,c0,ctl); dpp('v_add_f32',c1,c1,c1,ctl)
a(f'''s_lshl_b32 s3, s39, 6
v_and_b32 v5, 1, v0
v_lshlrev_b32 v3, 5, v5
v_add_u32 v3, s3, v3
v_bfe_u32 v5, v0, 4, 1
v_lshl_add_u32 v3, v5, 3, v3
v_bfe_u32 v5, v0, 5, 1
v_lshl_add_u32 v3, v5, 4, v3
ds_write_b64 v3, v[{c0}:{c1}] offset:12288
s_waitcnt lgkmcnt(0)''')
a(BAR)
nstamp('e_done')
a(f'''s_cmp_lt_u32 s2, {H0}
s_cbranch_scc1 K_TS
v_lshlrev_b32 v1, 4, v0
v_add_u32 v1, {MGL}, v1
ds_read_b128 v[{MG}:{MG+3}], v1
s_cmp_lt_u32 s2, {G0}
s_cbranch_scc1 H_GO''')
a(f'''v_lshlrev_b32 v1, 2, v0
s_mov_b32 s3, {OP}
s_add_u32 s24, s3, 4096
s_add_u32 s25, s3, 8192
s_add_u32 s26, s3, 12288''')
gather([f'buffer_load_dword v{16+k}, v1, {WS}, s{3 if k<2 else 23+k//2} offen offset:{2048*(k%2)}' for k in range(8)], range(16,24))
nstamp('g_gath')
sum8r(16)
bf16r(16,16)
a(f's_waitcnt lgkmcnt(0)\nv_mul_f32 v16, v16, v{MG}')
bf16r(16,16)
a(f'v_lshlrev_b32 v17, 16, v{XE}\nv_add_f32 v16, v16, v17')
bf16r(16,16)
a(f's_lshl_b32 s3, s39, 3\nv_mov_b32 v3, s3\nv_mov_b32 v2, 0')
def ln_wg(x,slot):
    a(f'v_mov_b32 v44, v{x}\nv_mul_f32 v45, v{x}, v{x}')
    wave_allreduce('v_add_f32',[44,45],[46,47])
    a(f'''ds_write_b64 v3, v[44:45] offset:{slot}
    s_waitcnt lgkmcnt(0)
    s_barrier
    ds_read_b128 v[20:23], v2 offset:{slot}
    ds_read_b128 v[24:27], v2 offset:{slot+16}
    ds_read_b128 v[28:31], v2 offset:{slot+32}
    ds_read_b128 v[32:35], v2 offset:{slot+48}
    s_waitcnt lgkmcnt(0)
    v_add_f32 v20, v20, v22
    v_add_f32 v21, v21, v23
    v_add_f32 v24, v24, v26
    v_add_f32 v25, v25, v27
    v_add_f32 v28, v28, v30
    v_add_f32 v29, v29, v31
    v_add_f32 v32, v32, v34
    v_add_f32 v33, v33, v35
    v_add_f32 v20, v20, v24
    v_add_f32 v21, v21, v25
    v_add_f32 v28, v28, v32
    v_add_f32 v29, v29, v33
    v_add_f32 v44, v20, v28
    v_add_f32 v45, v21, v29
    v_mul_f32 v44, 0x3b000000, v44
    v_mul_f32 v45, 0x3b000000, v45
    v_fma_f32 v45, -v44, v44, v45
    v_max_f32 v45, 0, v45''')
    ln_fin(44,45,46)
    a(f'v_sub_f32 v{x}, v{x}, v44')
    bf16r(x,x)
    div1(20,x,45,22,23)
    bf16r(x,20)
ln_wg(16,8192)
a(f'v_mul_f32 v16, v16, v{MG+2}')
bf16r(16,16)
a(f'v_add_f32 v16, v16, v{MG+1}')
bf16r(16,16)
ln_wg(16,8320)
nstamp('g_ln')
a(f'''v_lshlrev_b32 v1, 2, v0
ds_write_b32 v1, v16
v_lshrrev_b32 v3, 2, v0
v_lshlrev_b32 v3, 2, v3
s_waitcnt lgkmcnt(0)
s_barrier''')
for q in range(4): a(f'ds_read_b32 v{20+q}, v3 offset:{512*q}')
a('s_waitcnt lgkmcnt(0)')
for q in range(4): mul8(acc,W1+4*q,20+q,q==0)
c0,c1=halve8(acc)
for ctl in ['row_ror:8','row_ror:4']:
    a.nop(2); dpp('v_add_f32',c0,c0,c0,ctl); dpp('v_add_f32',c1,c1,c1,ctl)
a(f'''s_lshl_b32 s3, s39, 7
v_and_b32 v5, 3, v0
v_lshlrev_b32 v3, 5, v5
v_add_u32 v3, s3, v3
v_bfe_u32 v5, v0, 4, 1
v_lshl_add_u32 v3, v5, 3, v3
v_bfe_u32 v5, v0, 5, 1
v_lshl_add_u32 v3, v5, 4, v3
ds_write_b64 v3, v[{c0}:{c1}] offset:9216
s_lshr_b32 s28, s39, 2
s_lshl_b32 s28, s28, 4
v_add_u32 v3, s28, v0
v_and_b32 v3, 31, v3
v_lshlrev_b32 v3, 2, v3
ds_bpermute_b32 v45, v3, v{B1}
s_waitcnt lgkmcnt(0)
s_barrier''')
sum8_lds(9216,128,8,3)
bf16r(8,8)
a('v_lshlrev_b32 v45, 16, v45\nv_add_f32 v8, v8, v45')
bf16r(8,8)
a('''v_mul_f32 v9, v8, v8
v_mov_b32 v10, 0x3d372713
v_fma_f32 v9, v9, v10, 1.0
v_mul_f32 v9, v9, v8
v_mul_f32 v9, 0xc0135761, v9
v_exp_f32 v9, v9
s_nop 0
v_add_f32 v9, 1.0, v9
v_rcp_f32 v9, v9
s_nop 0
v_mul_f32 v8, v8, v9''')
bf16r(8,8)
a('s_nop 0')
for k in range(16): a(f'v_readlane_b32 s{80+k}, v8, {k}')
a('s_nop 1')
for d in range(16):
    a(f'v_lshlrev_b32 v44, 16, v{W2+d}\nv_and_b32 v45, 0xffff0000, v{W2+d}')
    op='v_mul_f32' if d==0 else 'v_fmac_f32'
    a(f'{op} v42, s{80+d}, v44\n{op} v43, s{80+d}, v45')
a(f'''v_and_b32 v1, 255, v0
v_lshlrev_b32 v1, 3, v1
s_cmp_lt_u32 s39, 4
s_cbranch_scc1 G_LO
ds_write_b64 v1, v[42:43] offset:10240
s_waitcnt lgkmcnt(0)
s_barrier
s_branch K_TS''')
a.label('G_LO')
a(f'''s_barrier
ds_read_b64 v[44:45], v1 offset:10240
s_lshl_b32 s3, s76, 11
s_add_u32 s3, s3, {O2P}
s_waitcnt lgkmcnt(0)
v_add_f32 v42, v42, v44
v_add_f32 v43, v43, v45
buffer_store_dwordx2 v[42:43], v1, {WS}, s3 offen {SC1}''')
nstamp('g_done')
a('s_branch K_TS')
a.label('H_GO')
a(f'''s_sub_u32 s28, s2, {H0}
v_lshrrev_b32 v4, 4, v0
v_and_b32 v5, 15, v0
v_lshlrev_b32 v1, 11, v4
v_lshl_add_u32 v1, v5, 4, v1
s_lshl_b32 s3, s28, 8
s_add_u32 s24, s3, {OP}
s_add_u32 s25, s3, {O2P}
s_add_u32 s26, s25, 65536''')
for r in list(range(16,20))+list(range(24,28)): a(f'v_mov_b32 v{r}, 0')
a('s_cmp_ge_u32 s39, 2\ns_cbranch_scc1 H_SK0')
gather([f'buffer_load_dwordx4 v[16:19], v1, {WS}, s24 offen'], range(16,20))
a.label('H_SK0')
def red4(regs,off):
    for sw in ['v_permlane16_swap_b32','v_permlane32_swap_b32']:
        for i,r in enumerate(regs): a(f'v_mov_b32 v{44+i}, v{r}')
        a.nop(1)
        for i,r in enumerate(regs): a(f'{sw} v{r}, v{44+i}')
        a.nop(1)
        for i,r in enumerate(regs): a(f'v_add_f32 v{r}, v{r}, v{44+i}')
    a(f's_lshl_b32 s3, s39, 8\nv_lshl_add_u32 v2, v5, 4, s3\nds_write_b128 v2, v[{regs[0]}:{regs[3]}] offset:{off}')
red4([16,17,18,19],0)
a(f'''v_lshlrev_b32 v6, 4, v0
s_waitcnt lgkmcnt(0)
v_mov_b32 v16, v{MG}
v_mov_b32 v17, v{MG+3}
v_lshlrev_b32 v18, 16, v{XE}
v_lshlrev_b32 v19, 16, v{B2}
ds_write_b128 v6, v[16:19] offset:4096
v_cmp_gt_u32 vcc, {NG5-32}, v4
s_and_saveexec_b64 s[34:35], vcc
s_cbranch_execz H_SK''')
gather([f'buffer_load_dwordx4 v[24:27], v1, {WS}, s26 offen'], range(24,28))
a.label('H_SK')
a('s_mov_b64 exec, s[34:35]')
gather([f'buffer_load_dwordx4 v[20:23], v1, {WS}, s25 offen'], range(20,24))
nstamp('h_gath')
for c_ in range(4): a(f'v_add_f32 v{20+c_}, v{20+c_}, v{24+c_}')
red4([20,21,22,23],2048)
a(f'''s_waitcnt lgkmcnt(0)
s_barrier
s_cmp_lg_u32 s39, 0
s_cbranch_scc1 K_TS
s_lshl_b32 s3, s28, 10
v_add_u32 v2, s3, v6
ds_read_b128 v[24:27], v2 offset:4096
v_lshlrev_b32 v1, 2, v0''')
sum8_lds(0,256,16,1)
sum8_lds(2048,256,17,1)
bf16r2(16,17,16,17,20)
a('v_mul_f32 v16, v16, v24\nv_add_f32 v17, v17, v27')
bf16r2(16,17,16,17,20)
a('v_add_f32 v16, v16, v26\nv_mul_f32 v17, v17, v25')
bf16r2(16,17,16,17,20)
srdp(S_A,13,1024)
a(f'''v_add_f32 v16, v16, v17
v_cvt_pk_bf16_f32 v16, v16, v16
v_lshlrev_b32 v1, 1, v0
s_lshl_b32 s3, s28, 7
buffer_store_short v16, v1, {SA}, s3 offen''')
if DBGT:
    srdp(S_DBG,14,256)
    a(f'''s_memrealtime s[100:101]
    s_waitcnt lgkmcnt(0)
    s_sub_u32 s100, s100, s72
    v_mov_b32 v2, s100
    s_lshl_b32 s3, s28, 2
    v_mov_b32 v3, 0
    v_cmp_eq_u32 vcc, 0, v0
    s_and_saveexec_b64 s[36:37], vcc
    buffer_store_dword v2, v3, {SD}, s3 offen offset:16''')
a.label('K_TS')
tsend(); a('s_endpgm')
a.label('AUX')
a(f'''v_subrev_u32 v0, 512, v0
v_and_b32 v11, 63, v0
v_lshlrev_b32 v11, 4, v11
s_lshl_b32 s3, s32, 8
v_lshl_add_u32 v6, v0, 1, s3
s_waitcnt lgkmcnt(0)''')
srdp(S_WS,15,WSBYTES); srdp(S_DBG,14,256); srdp(S_X,0,1024)
a(f'''buffer_load_dwordx4 v[56:59], v11, {SX}, 0 offen
buffer_load_ushort v46, v6, {SX}, 0 offen
s_cmp_lt_u32 s2, 192
s_cbranch_scc1 X_NOINIT
s_cmp_ge_u32 s2, 208
s_cbranch_scc1 X_NOINIT
s_barrier
s_cmp_ge_u32 s2, 198
s_cbranch_scc1 X_NOINIT
s_barrier''')
a.label('X_NOINIT')
a('s_waitcnt vmcnt(0)')
x8=list(range(60,68)); unpack8(x8,56)
ln_stats(x8,44,45,47)
a('v_lshlrev_b32 v46, 16, v46\nv_sub_f32 v46, v46, v44')
bf16r(46,46)
div1(18,46,45,20,21)
bf16r(46,18)
a(f'''v_lshlrev_b32 v1, 2, v0
s_cmp_ge_u32 s2, 192
s_cbranch_scc1 X_B1
s_cmp_lg_u32 s39, 8
s_cbranch_scc1 X_B1''')
l0=L('WA'); l1=L('WD')
a('s_mov_b32 s38, 0\nv_min_u32 v71, 5, v0\nv_lshlrev_b32 v71, 2, v71')
a.label(l0)
a(f'''buffer_load_dword v70, v71, {SD}, 0 offen offset:128 {SC1}
s_add_u32 s38, s38, 1
s_waitcnt vmcnt(0)
v_cmp_eq_u32 vcc, 0, v70
s_cmp_gt_u32 s38, 0x40000
s_cbranch_scc1 {l1}
s_nop 2
s_cmp_eq_u64 vcc, 0
s_cbranch_scc1 {l1}
s_sleep {DSL}
s_branch {l0}''')
a.label(l1)
a.label('X_B1')
a(BAR)
a(f'''s_cmp_ge_u32 s2, 192
s_cbranch_scc1 X_A
s_cmp_lg_u32 s39, 8
s_cbranch_scc1 X_A''')
sum8_lds(0,256,8,1)
a(f'''s_mul_i32 s3, s32, 12288
s_lshl_b32 s28, s33, 8
s_add_u32 s3, s3, s28
buffer_store_dword v8, v1, {WS}, s3 offen offset:{MODP} {SC1}''')
a.label('X_A')
if not DMA0: a(BAR)
a('v_lshlrev_b32 v6, 1, v6\ns_mov_b32 s25, 12288\ns_mov_b32 s26, 24576\ns_mov_b32 s27, 36864')
gather([f'buffer_load_dword v{16+2*p+k}, v6, {WS}, {"0" if p==0 else "s%d"%(24+p)} offen offset:{MODP+k*2048}' for p in range(4) for k in range(2)], range(16,24))
a('''v_add_f32 v16, v16, v18
v_add_f32 v20, v20, v22
v_add_f32 v17, v17, v19
v_add_f32 v21, v21, v23
v_add_f32 v16, v16, v20
v_add_f32 v17, v17, v21''')
bf16r2(16,17,16,17,47)
a('v_add_f32 v17, 1.0, v17')
bf16r(17,17)
a('v_mul_f32 v18, v46, v17')
bf16r(18,18)
a('v_add_f32 v18, v18, v16')
bf16r(18,18)
a('ds_write_b32 v1, v18 offset:4096\ns_waitcnt lgkmcnt(0)')
a(BAR)
a('s_cmp_lg_u32 s39, 8\ns_cbranch_scc1 X_PI')
poll_dbg(0,16)
a('s_branch X_B3')
a.label('X_PI')
a(f'''v_mov_b32 v16, -1
v_mov_b32 v17, -1
v_mov_b32 v18, -1
v_mov_b32 v19, -1
v_and_b32 v11, 63, v0
v_lshlrev_b32 v11, 4, v11
s_lshr_b32 s3, s2, 6
s_lshl_b32 s3, s3, 19
s_and_b32 s28, s2, 63
s_lshl_b32 s28, s28, 10
s_add_u32 s3, s3, s28
s_add_u32 s3, s3, {PART}''')
for q in range(8):
    a(f'buffer_store_dwordx4 v[16:19], v11, {WS}, s3 offen {SC1}')
    if q<7: a('s_add_u32 s3, s3, 65536')
a.label('X_B3')
a(BAR)
a('s_cmp_lg_u32 s39, 8\ns_cbranch_scc1 X_Q')
sum8_lds(2048,256,8,1)
a(f'''s_lshl_b32 s3, s2, 8
s_add_u32 s3, s3, {QP}
buffer_store_dword v8, v1, {WS}, s3 offen {SC1}''')
a.label('X_Q')
if not DMA0: a(BAR)
a(f'''v_and_b32 v7, 63, v0
v_lshlrev_b32 v7, 2, v7
s_lshl_b32 s3, s30, 11
s_sub_u32 s28, s39, 8
s_lshl_b32 s28, s28, 10
s_add_u32 s3, s3, s28
s_add_u32 s3, s3, {QP}''')
gather([f'buffer_load_dword v{16+m}, v7, {WS}, s3 offen offset:{256*m}' for m in range(4)], range(16,20))
a('''v_add_f32 v16, v16, v17
v_add_f32 v18, v18, v19
v_add_f32 v16, v16, v18''')
bf16r(16,16)
a('ds_write_b32 v1, v16 offset:4608\ns_waitcnt lgkmcnt(0)')
a(BAR)
a(BAR)
a(BAR)
a(BAR)
a(f'''s_cmp_lt_u32 s2, {H0}
s_cbranch_scc1 X_MGD
s_mov_b32 s24, 4096
s_mov_b32 s25, {4096+12288}
s_mov_b32 s26, {4096+24576}
s_mov_b32 s27, {4096+36864}
v_add_u32 v6, 4096, v1''')
gather([f'buffer_load_dword v{72+16*rr+4*p+k}, v{1 if k<2 else 6}, {WS}, s{24+p} offen offset:{MODP+(k%2)*2048+512*rr}' for rr in range(4) for p in range(4) for k in range(4)], range(72,136))
for rr in range(4):
    b=72+16*rr
    for k in range(4): a(f'v_add_f32 v{b+k}, v{b+k}, v{b+4+k}\nv_add_f32 v{b+8+k}, v{b+8+k}, v{b+12+k}\nv_add_f32 v{b+k}, v{b+k}, v{b+8+k}')
    bf16r2(b,b+1,b,b+1,20); bf16r2(b+2,b+3,b+2,b+3,20)
    a(f'v_add_f32 v{b+2}, 1.0, v{b+2}')
    bf16r(b+2,b+2)
    a(f'v_lshlrev_b32 v7, 2, v1\nv_add_u32 v7, {MGL+2048*rr}, v7\nds_write_b128 v7, v[{b}:{b+3}]')
a('s_waitcnt lgkmcnt(0)')
a.label('X_MGD')
a(BAR)
a(BAR)
a(BAR)
sum8_lds(4096,512,8,1)
a(f'''s_lshl_b32 s3, s2, 9
s_add_u32 s3, s3, {CP}
buffer_store_dword v8, v1, {WS}, s3 offen {SC1}''')
a(BAR)
a(BAR)
a(f'''s_cmp_lg_u32 s39, 8
s_cbranch_scc1 X_END
v_cmp_gt_u32 vcc, 16, v0
s_and_saveexec_b64 s[36:37], vcc''')
sum8_lds(12288,64,8,1)
a(f'''s_lshr_b32 s3, s2, 5
s_lshl_b32 s3, s3, 11
s_and_b32 s28, s2, 7
s_lshl_b32 s28, s28, 8
s_add_u32 s3, s3, s28
s_bfe_u32 s28, s2, 0x20003
s_lshl_b32 s28, s28, 6
s_add_u32 s3, s3, s28
s_add_u32 s3, s3, {OP}
buffer_store_dword v8, v1, {WS}, s3 offen {SC1}''')
a.label('X_END')
a.label('K_END'); a('s_endpgm')

KD=f'''.amdhsa_kernel {KN}
  .amdhsa_next_free_vgpr 160
  .amdhsa_next_free_sgpr 102
  .amdhsa_accum_offset 160
  .amdhsa_group_segment_fixed_size 0
  .amdhsa_kernarg_size 128
  .amdhsa_user_sgpr_count 2
  .amdhsa_user_sgpr_kernarg_segment_ptr 1
  .amdhsa_system_sgpr_workgroup_id_x 1
.end_amdhsa_kernel'''
out=[l for l in HDR if l.startswith(';') and '@launch' not in l and 'Override' not in l and 'grid=ceil' not in l]
out.append(f'; @launch grid=(256,1,1) block=(640,1,1) lds={LDS}')
out.append('.amdgcn_target "amdgcn-amd-amdhsa--gfx950"\n.text')
out+=a.L
out.append('.section .rodata,"a"\n.p2align 6\n'+KD)
dst=sys.argv[1] if len(sys.argv)>1 else 'cdna_kernels/%s.s'%NAME
open(dst,'w').write('\n'.join(out)+'\n')
print('wrote',dst,len(a.L),'lines')
```

```python
import sys, os
NAME='adaLN_cond__compressed_kv_cla__mixer_channel_mlp__decode'
HDR=open('cdna_kernels/%s.s.ref'%NAME).read().split('\n')
KN=NAME+'_kernel'
TS=os.environ.get('TS','0')=='1'
NST=os.environ.get('NST','').split(',')
SLP=os.environ.get('SLP','1')
DSL=os.environ.get('DSL','2')
SC1='sc1'
DMA0=os.environ.get('DMA0','0')=='1'
WQLM=os.environ.get('WQL','0')
WQL=WQLM!='0'
TLB=os.environ.get('TLB','0')
OPT=os.environ.get('OPT','0')=='1'
CPT=os.environ.get('CPT','0')=='1'
UVC=os.environ.get('UVC','0')
MODP=0x0
QP=0x10000
QA=0x20000
STAT=0x30000
CP=0x40000
OP=0x60000
O2P=0x70000
PART=0x100000
TSOFF=0x500000
WSBYTES=0x600000
XCH=0; RB=16384; REG=64*128; MGL=RB+8*REG; SC2=MGL+8192; LDS=SC2+2048
NG5=43; G0=213; H0=205
WQ=72; WUK=80; WUV=88; WO=96; TSV=104; VDMA=119; XE=120; B1=121; B2=122; VRED=123; MG=124; W1=128; W2=144
S_WS=4; S_DBG=8; S_X=12; S_A=16; S_B=20; S_C=96; P=40
LOG2E='0x3fb8aa3b'
WS=f's[{S_WS}:{S_WS+3}]'
SA=f's[{S_A}:{S_A+3}]'; SB=f's[{S_B}:{S_B+3}]'; SC=f's[{S_C}:{S_C+3}]'; SX=f's[{S_X}:{S_X+3}]'; SD=f's[{S_DBG}:{S_DBG+3}]'

class A:
    def __init__(s): s.L=[]
    def __call__(s,x):
        for l in x.strip('\n').split('\n'): s.L.append('    '+l.strip())
    def label(s,x): s.L.append(x+':')
    def nop(s,n):
        while n>0:
            k=min(n,16); s('s_nop %d'%(k-1)); n-=k
a=A()
def srd(d,lo,hi,nbytes):
    a(f's_mov_b32 s{d}, s{lo}\ns_mov_b32 s{d+1}, s{hi}\ns_mov_b32 s{d+2}, {nbytes}\ns_mov_b32 s{d+3}, 0x20000')
def srdp(d,i,n): srd(d,P+2*i,P+2*i+1,n)
def dpp(op,d,s0,s1,ctl): a(f'{op}_dpp v{d}, v{s0}, v{s1} {ctl} row_mask:0xf bank_mask:0xf')
def wave_allreduce(op, regs, tmps):
    for ctl in ['row_ror:8','row_ror:4','row_ror:2','row_ror:1']:
        a.nop(2 if len(regs)<3 else 1)
        for r in regs: dpp(op,r,r,r,ctl)
    for sw in ['v_permlane16_swap_b32','v_permlane32_swap_b32']:
        for r,t in zip(regs,tmps): a(f'v_mov_b32 v{t}, v{r}')
        a.nop(2)
        for r,t in zip(regs,tmps): a(f'{sw} v{r}, v{t}')
        a.nop(1)
        for r,t in zip(regs,tmps): a(f'{op} v{r}, v{r}, v{t}')
def bf16r(d,s_): a(f'v_cvt_pk_bf16_f32 v{d}, v{s_}, v{s_}\nv_lshlrev_b32 v{d}, 16, v{d}')
def bf16r2(d0,d1,s0,s1,t): a(f'v_cvt_pk_bf16_f32 v{t}, v{s0}, v{s1}\nv_lshlrev_b32 v{d0}, 16, v{t}\nv_and_b32 v{d1}, 0xffff0000, v{t}')
def halve8(acc):
    a.nop(2)
    for i in range(4): a(f'v_permlane32_swap_b32 v{acc[i]}, v{acc[i+4]}')
    a.nop(1)
    for i in range(4): a(f'v_add_f32 v{acc[i]}, v{acc[i]}, v{acc[i+4]}')
    a.nop(1)
    for i in range(2): a(f'v_permlane16_swap_b32 v{acc[i]}, v{acc[i+2]}')
    a.nop(1)
    for i in range(2): a(f'v_add_f32 v{acc[i]}, v{acc[i]}, v{acc[i+2]}')
    return acc[0],acc[1]
def halve16(acc, rors):
    a.nop(2)
    for i in range(8): a(f'v_permlane32_swap_b32 v{acc[i]}, v{acc[i+8]}')
    a.nop(1)
    for i in range(8): a(f'v_add_f32 v{acc[i]}, v{acc[i]}, v{acc[i+8]}')
    a.nop(1)
    for i in range(4): a(f'v_permlane16_swap_b32 v{acc[i]}, v{acc[i+4]}')
    a.nop(1)
    for i in range(4): a(f'v_add_f32 v{acc[i]}, v{acc[i]}, v{acc[i+4]}')
    for ctl in rors:
        for i in range(4): dpp('v_add_f32',acc[i],acc[i],acc[i],ctl)
    return acc[:4]
def mul8(acc,w,sc,first,t0=42,t1=43):
    for k in range(4):
        a(f'v_lshlrev_b32 v{t0}, 16, v{w+k}\nv_and_b32 v{t1}, 0xffff0000, v{w+k}')
        op='v_mul_f32' if first else 'v_fmac_f32'
        a(f'{op} v{acc[2*k]}, v{sc}, v{t0}\n{op} v{acc[2*k+1]}, v{sc}, v{t1}')
def mulN(acc,w,n,sc,t0=42,t1=43):
    for k in range(n):
        a(f'v_lshlrev_b32 v{t0}, 16, v{w+k}\nv_and_b32 v{t1}, 0xffff0000, v{w+k}\nv_mul_f32 v{acc[2*k]}, v{sc}, v{t0}\nv_mul_f32 v{acc[2*k+1]}, v{sc}, v{t1}')
def ln_fin(vm,vs,t0):
    bf16r2(vm,vs,vm,vs,t0)
    a(f'v_add_f32 v{vs}, 0x3727c5ac, v{vs}')
    bf16r(vs,vs)
    a(f'v_sqrt_f32 v{vs}, v{vs}\ns_nop 0')
    bf16r(vs,vs)
def ln_stats(x8, vm, vs, t0):
    a(f'v_add_f32 v{vm}, v{x8[0]}, v{x8[1]}')
    for k in range(2,8): a(f'v_add_f32 v{vm}, v{vm}, v{x8[k]}')
    wave_allreduce('v_add_f32',[vm],[t0])
    a(f'v_mul_f32 v{vm}, 0x3b000000, v{vm}\nv_mov_b32 v{vs}, 0')
    for k in range(8): a(f'v_sub_f32 v{t0}, v{x8[k]}, v{vm}\nv_fmac_f32 v{vs}, v{t0}, v{t0}')
    wave_allreduce('v_add_f32',[vs],[t0])
    a(f'v_mul_f32 v{vs}, 0x3b000000, v{vs}')
    ln_fin(vm,vs,t0)
def div1(d,n,den,t0,t1):
    a(f'''v_rcp_f32 v{t0}, v{den}
    s_nop 0
    v_mul_f32 v{t1}, v{n}, v{t0}
    v_fma_f32 v{d}, -v{t1}, v{den}, v{n}
    v_fma_f32 v{d}, v{d}, v{t0}, v{t1}''')
def unpack8(dst, src):
    for k in range(4): a(f'v_and_b32 v{dst[2*k+1]}, 0xffff0000, v{src+k}\nv_lshlrev_b32 v{dst[2*k]}, 16, v{src+k}')
def sum8r(b):
    a(f'''v_add_f32 v{b}, v{b}, v{b+1}
    v_add_f32 v{b+2}, v{b+2}, v{b+3}
    v_add_f32 v{b+4}, v{b+4}, v{b+5}
    v_add_f32 v{b+6}, v{b+6}, v{b+7}
    v_add_f32 v{b}, v{b}, v{b+2}
    v_add_f32 v{b+4}, v{b+4}, v{b+6}
    v_add_f32 v{b}, v{b}, v{b+4}''')
def sum8_lds(off,stride,dst,addr):
    for w in range(8): a(f'ds_read_b32 v{8+w}, v{addr} offset:{off+w*stride}')
    a('s_waitcnt lgkmcnt(0)')
    sum8r(8)
    if dst!=8: a(f'v_mov_b32 v{dst}, v8')
lid=[0]
def L(p):
    lid[0]+=1; return f'{p}{lid[0]}'
def nstamp(nm):
    if TS and nm in NST:
        i=1+NST.index(nm)
        a(f's_memrealtime s[100:101]\ns_waitcnt lgkmcnt(0)\nv_mov_b32 v{TSV+2*i}, s100\nv_mov_b32 v{TSV+1+2*i}, s101')
def tsend():
    if not TS: return
    a(f'''s_waitcnt vmcnt(0)
    s_memrealtime s[100:101]
    s_mov_b64 exec, -1
    v_cmp_eq_u32 vcc, 0, v0
    s_and_saveexec_b64 s[36:37], vcc
    s_waitcnt lgkmcnt(0)
    v_mov_b32 v5, 0
    s_lshl_b32 s3, s2, 6
    s_add_u32 s3, s3, {TSOFF}
    v_mov_b32 v0, s100
    v_mov_b32 v1, s101
    v_mov_b32 v2, 0
    v_mov_b32 v3, 0
    buffer_store_dwordx4 v[{TSV}:{TSV+3}], v5, s[4:7], s3 offen
    buffer_store_dwordx4 v[{TSV+4}:{TSV+7}], v5, s[4:7], s3 offen offset:16
    buffer_store_dwordx4 v[{TSV+8}:{TSV+11}], v5, s[4:7], s3 offen offset:32
    buffer_store_dwordx4 v[0:3], v5, s[4:7], s3 offen offset:48''')
import re
PIPE=os.environ.get('PIPE','0')=='1'
def chk(r):
    r=list(r)
    if len(r)==1: a(f'v_mov_b32 v70, v{r[0]}'); i=1
    elif len(r)==2: a(f'v_max_u32 v70, v{r[0]}, v{r[1]}'); i=2
    else: a(f'v_max3_u32 v70, v{r[0]}, v{r[1]}, v{r[2]}'); i=3
    while i<len(r):
        if i+1<len(r): a(f'v_max3_u32 v70, v70, v{r[i]}, v{r[i+1]}'); i+=2
        else: a(f'v_max_u32 v70, v70, v{r[i]}'); i+=1
    a('v_cmp_eq_u32 vcc, -1, v70')
def shift_load(x,delta):
    m=re.match(r'(\S+) v\[(\d+):(\d+)\](.*)',x)
    if m: return f'{m.group(1)} v[{int(m.group(2))+delta}:{int(m.group(3))+delta}]{m.group(4)}'
    m=re.match(r'(\S+) v(\d+)(,.*)',x)
    return f'{m.group(1)} v{int(m.group(2))+delta}{m.group(3)}'
def gather(loads, regs, delta=None):
    l0=L('GA'); l1=L('GD'); l2=L('GB')
    regs=list(regs)
    if delta is None or not PIPE:
        a('s_mov_b32 s38, 0')
        a.label(l0)
        for x in loads: a(x+' '+SC1)
        a('s_add_u32 s38, s38, 1\ns_waitcnt vmcnt(0)')
        chk(regs)
        a(f'''s_cmp_gt_u32 s38, 0x40000
        s_cbranch_scc1 {l1}
        s_nop 2
        s_cmp_eq_u64 vcc, 0
        s_cbranch_scc1 {l1}
        s_sleep {SLP}
        s_branch {l0}''')
        a.label(l1)
        return
    n=len(loads); lb=[shift_load(x,delta) for x in loads]; rb=[r+delta for r in regs]
    a('s_mov_b32 s38, 0')
    for x in loads: a(x+' '+SC1)
    a('s_sleep 2')
    a.label(l0)
    for x in lb: a(x+' '+SC1)
    a(f's_add_u32 s38, s38, 1\ns_waitcnt vmcnt({n})')
    chk(regs)
    a(f'''s_cmp_gt_u32 s38, 0x40000
    s_cbranch_scc1 {l1}
    s_nop 2
    s_cmp_eq_u64 vcc, 0
    s_cbranch_scc1 {l1}''')
    for x in loads: a(x+' '+SC1)
    a(f's_waitcnt vmcnt({n})')
    chk(rb)
    a(f'''s_nop 4
    s_cmp_eq_u64 vcc, 0
    s_cbranch_scc0 {l0}
    s_waitcnt vmcnt(0)''')
    for r,q in zip(regs,rb): a(f'v_mov_b32 v{r}, v{q}')
    a.label(l1)
    a('s_waitcnt vmcnt(0)')
def poll_dbg(word,val):
    l0=L('WA'); l1=L('WD')
    a('s_mov_b32 s38, 0\nv_mov_b32 v71, 0')
    a.label(l0)
    a(f'''buffer_load_dword v70, v71, {SD}, 0 offen offset:{4*word} {SC1}
    s_add_u32 s38, s38, 1
    s_waitcnt vmcnt(0)
    v_readfirstlane_b32 s3, v70
    s_cmp_gt_u32 s38, 0x40000
    s_cbranch_scc1 {l1}
    s_cmp_ge_u32 s3, {val}
    s_cbranch_scc1 {l1}
    s_sleep {DSL}
    s_branch {l0}''')
    a.label(l1)
def red8_w(acc, off):
    c0,c1=halve8(acc)
    a.nop(2)
    dpp('v_add_f32',c0,c0,c0,'row_ror:8'); dpp('v_add_f32',c1,c1,c1,'row_ror:8')
    a(f'ds_write_b64 v{VRED}, v[{c0}:{c1}] offset:{off}\ns_waitcnt lgkmcnt(0)')
BAR='s_barrier'

a.L.append(f'.globl {KN}\n.p2align 8\n.type {KN},@function\n{KN}:')
if TS:
    a(f's_memrealtime s[100:101]\ns_waitcnt lgkmcnt(0)\nv_mov_b32 v{TSV}, s100\nv_mov_b32 v{TSV+1}, s101')
    for i in range(TSV+2,TSV+12): a(f'v_mov_b32 v{i}, 0')
DBGT=os.environ.get('DBGT','0')=='1'
if DBGT: a('s_memrealtime s[72:73]')
a(f'''s_cmp_ge_u32 s2, 256
s_cbranch_scc1 K_END
s_load_dwordx16 s[40:55], s[0:1], 0
s_load_dwordx16 s[56:71], s[0:1], 64
v_lshrrev_b32 v1, 6, v0
v_lshrrev_b32 v4, 3, v0
v_readfirstlane_b32 s39, v1
v_and_b32 v5, 7, v0
s_lshr_b32 s30, s2, 3
s_and_b32 s31, s2, 7
s_and_b32 s32, s2, 3
s_lshr_b32 s33, s2, 2
s_cmp_ge_u32 s39, 8
s_cbranch_scc1 AUX''')
a(f'''s_lshl_b32 s3, s32, 7
v_add_u32 v6, s3, v4
v_lshlrev_b32 v7, 1, v6
v_mul_u32_u24 v8, 0x1800, v6
v_lshl_add_u32 v8, v5, 4, v8
s_lshl_b32 s3, s33, 7
v_add_u32 v8, s3, v8
s_mov_b32 s34, 393216
v_lshlrev_b32 v9, 13, v6
v_lshl_add_u32 v9, v5, 4, v9
s_lshl_b32 s3, s30, 8
s_bfe_u32 s28, s2, 0x10002
s_lshl_b32 s28, s28, 7
s_add_u32 s3, s3, s28
v_add_u32 v9, s3, v9
s_mov_b32 s35, 0x80000
v_lshlrev_b32 v10, 13, v4
v_lshl_add_u32 v10, v5, 5, v10
s_lshl_b32 s3, s31, 19
s_lshl_b32 s28, s30, 8
s_add_u32 s74, s3, s28
v_lshlrev_b32 v12, 1, v0
s_lshl_b32 s3, s39, 8
v_lshlrev_b32 v{VRED}, 5, v5
v_add_u32 v{VRED}, s3, v{VRED}
v_bfe_u32 v2, v0, 4, 1
v_lshl_add_u32 v{VRED}, v2, 3, v{VRED}
v_bfe_u32 v2, v0, 5, 1
v_lshl_add_u32 v{VRED}, v2, 4, v{VRED}
s_and_b32 s77, s2, 63
s_lshr_b32 s78, s2, 6
v_and_b32 v1, 63, v0
v_lshrrev_b32 v2, 3, v1
v_and_b32 v3, 7, v1
v_xor_b32 v3, v3, v2
v_lshlrev_b32 v3, 4, v3
v_lshl_add_u32 v{VDMA}, v2, 10, v3
s_lshl_b32 s3, s39, 7
s_lshl_b32 s29, s77, 16
s_add_u32 s29, s29, s3
s_mul_i32 s79, s39, {REG}
s_add_u32 s79, s79, {RB}
s_sub_u32 s76, s2, {G0}
s_waitcnt lgkmcnt(0)''')
srdp(S_WS,15,WSBYTES); srdp(S_X,0,1024); srdp(S_A,12,3145728); srdp(S_B,11,1024)
a('s_cmp_lt_u32 s2, 192\ns_cbranch_scc1 C_MLD\ns_cmp_ge_u32 s2, 208\ns_cbranch_scc1 C_NOM')
srdp(S_DBG,14,256)
a(f'''s_sub_u32 s28, s2, 192
v_lshlrev_b32 v1, 4, v0
v_mov_b32 v16, -1
v_mov_b32 v17, -1
v_mov_b32 v18, -1
v_mov_b32 v19, -1
v_mov_b32 v20, 1
v_mov_b32 v21, 0
s_lshl_b32 s3, s28, 13
s_cmp_ge_u32 s28, 6
s_cbranch_scc1 C_INIT2
buffer_store_dwordx4 v[16:19], v1, {WS}, s3 offen {SC1}
s_waitcnt vmcnt(0)''')
nstamp('i_ack')
a(f'''s_barrier
v_cmp_eq_u32 vcc, 0, v0
s_and_saveexec_b64 s[36:37], vcc
s_lshl_b32 s24, s28, 2
buffer_store_dword v20, v21, {SD}, s24 offen offset:128 {SC1}
s_mov_b64 exec, s[36:37]''')
if TS and 'i_at' in NST: a('s_waitcnt vmcnt(0)')
nstamp('i_at')
a.label('C_INIT2')
a(f'''s_lshl_b32 s3, s28, 15
s_add_u32 s3, s3, 0x10000
buffer_store_dwordx4 v[16:19], v1, {WS}, s3 offen {SC1}
s_add_u32 s3, s3, 8192
buffer_store_dwordx4 v[16:19], v1, {WS}, s3 offen {SC1}
s_add_u32 s3, s3, 8192
buffer_store_dwordx4 v[16:19], v1, {WS}, s3 offen {SC1}
s_add_u32 s3, s3, 8192
buffer_store_dwordx4 v[16:19], v1, {WS}, s3 offen {SC1}
s_waitcnt vmcnt(0)
s_barrier
v_cmp_eq_u32 vcc, 0, v0
s_and_saveexec_b64 s[36:37], vcc
buffer_atomic_add v20, v21, {SD}, 0 offen
s_mov_b64 exec, s[36:37]
s_branch C_NOM''')
a.label('C_MLD')
a(f'''buffer_load_ushort v24, v7, {SB}, 0 offen
buffer_load_ushort v25, v7, {SB}, 0 offen offset:128
buffer_load_dwordx4 v[32:35], v8, {SA}, 0 offen
buffer_load_dwordx4 v[36:39], v8, {SA}, s34 offen''')
a.label('C_NOM')
srdp(S_A,2,4194304); srdp(S_B,3,4194304); srdp(S_C,1,4194304)
def wqload(part=3):
    if part&1:
        srdp(S_A,2,4194304)
        a(f'''buffer_load_dwordx4 v[{WQ}:{WQ+3}], v9, {SA}, 0 offen
        buffer_load_dwordx4 v[{WQ+4}:{WQ+7}], v9, {SA}, s35 offen''')
    if part&2:
        srdp(S_B,3,4194304)
        a(f'''buffer_load_dwordx4 v[{WUK}:{WUK+3}], v10, {SB}, s74 offen
        buffer_load_dwordx4 v[{WUK+4}:{WUK+7}], v10, {SB}, s74 offen offset:16''')
if WQL: a('s_cmp_lt_u32 s2, 192\ns_cbranch_scc1 C_NOWQ')
wqload()
if WQL: a.label('C_NOWQ')
a(f'buffer_load_ushort v{XE}, v12, {SX}, 0 offen')
srdp(S_A,10,1024)
a(f'buffer_load_ushort v{B2}, v12, {SA}, 0 offen')
def dma(lo,hi):
    for i in range(lo,hi):
        a(f's_add_u32 m0, s79, {1024*i}\ns_add_u32 s3, s29, {8192*i}\nbuffer_load_dwordx4 v{VDMA}, {SC}, s3 offen lds')
def stage_uv():
    srdp(S_A,4,4194304); srdp(S_B,5,4194304)
    a(f'''v_lshrrev_b32 v4, 3, v0
    v_and_b32 v5, 7, v0
    v_lshlrev_b32 v10, 13, v4
    v_lshl_add_u32 v10, v5, 5, v10
    buffer_load_dwordx4 v[{WUV}:{WUV+3}], v10, {SA}, s74 offen
    buffer_load_dwordx4 v[{WUV+4}:{WUV+7}], v10, {SA}, s74 offen offset:16''')
def stage_o():
    a(f'''s_lshr_b32 s3, s2, 5
    s_lshl_b32 s3, s3, 19
    s_and_b32 s28, s2, 7
    s_lshl_b32 s28, s28, 7
    s_add_u32 s3, s3, s28
    s_bfe_u32 s28, s2, 0x20003
    s_lshl_b32 s28, s28, 5
    s_add_u32 s3, s3, s28
    v_lshrrev_b32 v11, 1, v0
    v_lshlrev_b32 v11, 10, v11
    v_and_b32 v15, 1, v0
    v_lshl_add_u32 v11, v15, 4, v11
    s_add_u32 s28, s3, 0x40000
    buffer_load_dwordx4 v[{WO}:{WO+3}], v11, {SB}, s3 offen
    buffer_load_dwordx4 v[{WO+4}:{WO+7}], v11, {SB}, s28 offen''')
def gload1():
    srdp(S_A,7,512*2752)
    a(f'''v_lshrrev_b32 v6, 2, v0
    v_mul_u32_u24 v6, 2752, v6
    v_and_b32 v15, 3, v0
    v_lshl_add_u32 v6, v15, 4, v6
    s_lshl_b32 s28, s76, 6''')
    for q in range(4):
        a(f's_add_u32 s3, s28, {2752*128*q}\nbuffer_load_dwordx4 v[{W1+4*q}:{W1+4*q+3}], v6, {SA}, s3 offen')
    srdp(S_A,8,2752)
    a(f'''v_and_b32 v6, 31, v0
    v_lshlrev_b32 v6, 1, v6
    buffer_load_ushort v{B1}, v6, {SA}, s28 offen''')
def gload2():
    srdp(S_A,9,1376*1024)
    a(f'''v_and_b32 v6, 255, v0
    v_lshlrev_b32 v6, 2, v6
    s_lshl_b32 s3, s76, 15
    s_lshr_b32 s28, s39, 2
    s_lshl_b32 s28, s28, 14
    s_add_u32 s3, s3, s28''')
    for d in range(16):
        if d%4==0 and d>0: a('s_add_u32 s3, s3, 4096')
        a(f'buffer_load_dword v{W2+d}, v6, {SA}, s3 offen offset:{1024*(d%4)}')
G2=os.environ.get('G2','d')
G1=os.environ.get('G1','t0')
ND=8 if DMA0 else 0
if DMA0: dma(0,8)
if G1=='t0':
    a(f's_cmp_lt_u32 s2, {G0}\ns_cbranch_scc1 C_NOG')
    gload1()
    if G2=='t0': gload2()
    a(f's_waitcnt vmcnt({(23 if G2=="t0" else 7)+ND})')
    a.label('C_NOG')
GSK=G0 if G1=='t0' else 1000
a('s_cmp_ge_u32 s2, 192\ns_cbranch_scc1 C_M_DONE\ns_waitcnt vmcnt(%d)'%(8+ND-(4 if WQL else 0)))
for i in range(2): a(f'v_lshlrev_b32 v{24+i}, 16, v{24+i}\nv_mul_f32 v{28+i}, 0xbfb8aa3b, v{24+i}')
for i in range(2): a(f'v_exp_f32 v{28+i}, v{28+i}')
a('s_nop 0')
for i in range(2): a(f'v_add_f32 v{28+i}, 1.0, v{28+i}')
for i in range(2): a(f'v_rcp_f32 v{28+i}, v{28+i}')
a('s_nop 0')
for i in range(2): a(f'v_mul_f32 v{24+i}, v{24+i}, v{28+i}')
bf16r2(24,25,24,25,28)
acc=list(range(48,56))
a(f's_waitcnt vmcnt({6+ND-(4 if WQL else 0)})')
if WQLM=='2': wqload(1)
mul8(acc,32,24,True); mul8(acc,36,25,False)
red8_w(acc,0)
a.label('C_M_DONE')
nstamp('m_pre')
a(BAR)
nstamp('m_done')
if not DMA0:
    a(BAR)
    if WQL:
        a('s_cmp_ge_u32 s2, 192\ns_cbranch_scc1 C_NOWQ2')
        wqload(2 if WQLM=='2' else 3)
        a('s_nop 0')
        a.label('C_NOWQ2')
    dma(0,4)
a(f's_cmp_ge_u32 s2, {GSK}\ns_cbranch_scc1 CW1\ns_waitcnt vmcnt({12 if DMA0 else (6 if WQL else 8)})')
a.label('CW1')
a('v_lshlrev_b32 v3, 2, v4')
a(BAR)
nstamp('a_gath')
a('ds_read_b32 v40, v3 offset:4096\nds_read_b32 v41, v3 offset:4352\ns_waitcnt lgkmcnt(0)')
mul8(acc,WQ,40,True); mul8(acc,WQ+4,41,False)
red8_w(acc,2048)
a(BAR)
nstamp('a_done')
if not DMA0:
    a(BAR)
    dma(4,8)
a(f's_cmp_ge_u32 s2, {GSK}\ns_cbranch_scc1 CW2\ns_waitcnt vmcnt({8 if WQL else 10})')
a.label('CW2')
a('v_lshlrev_b32 v1, 6, v5')
a(BAR)
nstamp('b_gath')
for q in range(4): a(f'ds_read_b128 v[{16+4*q}:{19+4*q}], v1 offset:{4608+16*q}')
a('s_waitcnt lgkmcnt(0)')
for k in range(8):
    a(f'v_lshlrev_b32 v42, 16, v{WUK+k}\nv_and_b32 v43, 0xffff0000, v{WUK+k}')
    if k==0: a('v_mul_f32 v48, v16, v42\nv_mul_f32 v49, v17, v43')
    else: a(f'v_fmac_f32 v48, v{16+2*k}, v42\nv_fmac_f32 v49, v{17+2*k}, v43')
a('v_add_f32 v48, v48, v49')
for ctl in ['quad_perm:[1,0,3,2]','quad_perm:[2,3,0,1]','row_half_mirror']:
    a.nop(2); dpp('v_add_f32',48,48,48,ctl)
a(f'''v_cvt_pk_bf16_f32 v49, v48, v48
v_and_b32 v50, 0xffff0000, v49
v_sub_f32 v48, v48, v50
v_cvt_pk_bf16_f32 v48, v48, v48
v_and_b32 v49, 0xffff, v49
v_lshl_or_b32 v48, v48, 16, v49
v_lshlrev_b32 v1, 2, v4
s_lshl_b32 s3, s2, 8
s_add_u32 s3, s3, {QA}
v_cmp_eq_u32 vcc, 0, v5
s_and_saveexec_b64 s[36:37], vcc
buffer_store_dword v48, v1, {WS}, s3 offen {SC1}
s_mov_b64 exec, s[36:37]''')
a(BAR)
nstamp('b_done')
if UVC=='0': stage_uv()
a(f'''v_and_b32 v1, 63, v0
v_lshrrev_b32 v2, 4, v1
v_and_b32 v3, 15, v1
v_min_u32 v6, 7, v3
v_lshlrev_b32 v6, 11, v6
v_lshl_add_u32 v6, v2, 5, v6
s_lshl_b32 s24, s78, 14
s_lshl_b32 s26, s39, 8
s_add_u32 s24, s24, s26
s_add_u32 s24, s24, {QA}
v_and_b32 v7, 7, v3
v_xor_b32 v7, v7, v2
v_lshlrev_b32 v7, 4, v7
v_lshl_add_u32 v7, v3, 7, v7
v_add_u32 v7, s79, v7
v_xor_b32 v8, 64, v7
v_and_b32 v9, 7, v3
v_lshl_add_u32 v11, v2, 3, v9
v_lshlrev_b32 v11, 4, v11
s_lshl_b32 s3, s39, 11
v_add_u32 v12, s3, v11
s_mov_b32 s25, 0x05040100
s_mov_b32 s26, 0x07060302''')
D1=56
for r in range(16): a(f'v_mov_b32 v{D1+r}, 0')
gather([f'buffer_load_dwordx4 v[{16+4*q}:{19+4*q}], v6, {WS}, s24 offen offset:{(q>>1)*128+(q&1)*16}' for q in range(4)], range(16,32), 16)
nstamp('c_gath')
a('v_mov_b32 v70, 0\nv_mov_b32 v71, 0\nv_mov_b32 v14, v11')
if UVC=='1': stage_uv(); stage_o()
if UVC=='2': stage_uv()
a('v_mov_b32 v11, v14')
for s_ in range(2):
    for k in range(4):
        x0=16+8*s_+2*k
        a(f'v_perm_b32 v{32+4*s_+k}, v{x0+1}, v{x0}, s25\nv_perm_b32 v{40+4*s_+k}, v{x0+1}, v{x0}, s26')
for T in range(4):
    base=16+8*(T&1)
    a(f'ds_read_b128 v[{base}:{base+3}], v7 offset:{2048*T}\nds_read_b128 v[{base+4}:{base+7}], v8 offset:{2048*T}')
    for s_ in range(2):
        a(f's_waitcnt lgkmcnt({1-s_})')
        a(f'v_mfma_f32_16x16x32_bf16 v[{D1+4*T}:{D1+4*T+3}], v[{base+4*s_}:{base+4*s_+3}], v[{32+4*s_}:{35+4*s_}], v[{D1+4*T}:{D1+4*T+3}]')
        a(f'v_mfma_f32_16x16x32_bf16 v[{D1+4*T}:{D1+4*T+3}], v[{base+4*s_}:{base+4*s_+3}], v[{40+4*s_}:{43+4*s_}], v[{D1+4*T}:{D1+4*T+3}]')
a('v_cmp_gt_u32 vcc, 8, v3\ns_and_saveexec_b64 s[36:37], vcc')
a.nop(7)
for T in range(4): a(f'ds_write_b128 v12, v[{D1+4*T}:{D1+4*T+3}] offset:{XCH+512*T}')
a('s_mov_b64 exec, s[36:37]\ns_waitcnt lgkmcnt(0)')
a(BAR)
nstamp('c_g1')
P0=16
a(f'''s_lshr_b32 s3, s39, 1
s_lshl_b32 s3, s3, 9
s_and_b32 s28, s39, 1
s_lshl_b32 s28, s28, 3
s_add_u32 s3, s3, s28
v_add_u32 v12, s3, v11''')
for w in range(8): a(f'ds_read_b64 v[{16+2*w}:{17+2*w}], v12 offset:{XCH+w*2048}')
a(f'v_add_u32 v12, {SC2}, v12\nv_add_u32 v11, {SC2}, v11\ns_waitcnt lgkmcnt(0)')
for k in range(2):
    a(f'''v_add_f32 v{16+k}, v{16+k}, v{18+k}
    v_add_f32 v{20+k}, v{20+k}, v{22+k}
    v_add_f32 v{24+k}, v{24+k}, v{26+k}
    v_add_f32 v{28+k}, v{28+k}, v{30+k}
    v_add_f32 v{16+k}, v{16+k}, v{20+k}
    v_add_f32 v{24+k}, v{24+k}, v{28+k}
    v_add_f32 v{16+k}, v{16+k}, v{24+k}''')
bf16r2(16,17,16,17,18)
a('v_mul_f32 v16, 0x3db504f3, v16\nv_mul_f32 v17, 0x3db504f3, v17')
bf16r2(16,17,16,17,18)
a('ds_write_b64 v12, v[16:17]\ns_waitcnt lgkmcnt(0)')
a(BAR)
for T in range(4): a(f'ds_read_b128 v[{16+4*T}:{19+4*T}], v11 offset:{512*T}')
a('s_waitcnt lgkmcnt(0)')
nstamp('c_x')
a(f'v_max_f32 v32, v{P0}, v{P0+1}')
for r in range(2,16,2): a(f'v_max3_f32 v32, v32, v{P0+r}, v{P0+r+1}')
for sw in ['v_permlane16_swap_b32','v_permlane32_swap_b32']:
    a(f'v_mov_b32 v33, v32\ns_nop 1\n{sw} v32, v33\ns_nop 1\nv_max_f32 v32, v32, v33')
a(f's_mov_b32 s3, {LOG2E}\nv_mul_f32 v33, s3, v32')
for r in range(16): a(f'v_fma_f32 v{P0+r}, v{P0+r}, s3, -v33')
for r in range(16): a(f'v_exp_f32 v{P0+r}, v{P0+r}')
a(f'''v_lshrrev_b32 v7, 2, v3
v_lshl_add_u32 v7, v2, 2, v7
v_and_b32 v8, 7, v7
v_bfe_u32 v9, v1, 1, 1
v_xor_b32 v8, v8, v9
v_lshlrev_b32 v8, 4, v8
v_lshl_add_u32 v8, v7, 7, v8
v_and_b32 v9, 1, v1
v_lshl_add_u32 v8, v9, 3, v8
v_add_u32 v8, s79, v8''')
for kk in range(2):
    for hh in range(2):
        T=2*kk+hh
        a(f'v_cvt_pk_bf16_f32 v{40+4*kk+2*hh}, v{P0+4*T}, v{P0+4*T+1}\nv_cvt_pk_bf16_f32 v{41+4*kk+2*hh}, v{P0+4*T+2}, v{P0+4*T+3}')
nstamp('c_sm')
D2=56
for r in range(16): a(f'v_mov_b32 v{D2+r}, 0')
FRG=[72,76,80,84,48,52,16,20]
def rdt(t):
    a(f'v_xor_b32 v13, {t<<5}, v8')
    for kk in range(2):
        f=FRG[t*2+kk]
        a(f'ds_read_b64_tr_b16 v[{f}:{f+1}], v13 offset:{2048*(2*kk)}\nds_read_b64_tr_b16 v[{f+2}:{f+3}], v13 offset:{2048*(2*kk+1)}')
rdt(0); rdt(1); rdt(2)
a(f'v_add_f32 v34, v{P0}, v{P0+1}')
for r in range(2,16): a(f'v_add_f32 v34, v34, v{P0+r}')
rdt(3)
for sw in ['v_permlane16_swap_b32','v_permlane32_swap_b32']:
    a(f'v_mov_b32 v33, v34\ns_nop 1\n{sw} v34, v33\ns_nop 1\nv_add_f32 v34, v34, v33')
for t in range(4):
    for kk in range(2):
        f=FRG[t*2+kk]
        a(f's_waitcnt lgkmcnt({14-2*(t*2+kk)})')
        a(f'v_mfma_f32_16x16x32_bf16 v[{D2+4*t}:{D2+4*t+3}], v[{f}:{f+3}], v[{40+4*kk}:{43+4*kk}], v[{D2+4*t}:{D2+4*t+3}]')
nstamp('c_g2')
a(f'''v_lshlrev_b32 v10, 7, v3
v_lshl_add_u32 v10, v2, 3, v10
v_add_u32 v10, s79, v10
v_lshlrev_b32 v11, 4, v1
v_add_u32 v11, s79, v11
v_lshrrev_b32 v12, 3, v1
v_lshlrev_b32 v12, 16, v12
v_and_b32 v13, 7, v1
v_lshl_add_u32 v12, v13, 4, v12
s_lshl_b32 s24, s78, 19
s_lshl_b32 s26, s77, 10
s_add_u32 s24, s24, s26
s_lshl_b32 s26, s39, 7
s_add_u32 s24, s24, s26
s_add_u32 s24, s24, {PART}
s_lshl_b32 s25, s78, 12
s_lshl_b32 s26, s77, 3
s_add_u32 s25, s25, s26
s_add_u32 s25, s25, {STAT}
v_lshlrev_b32 v9, 9, v3
v_mov_b32 v35, v34
v_mov_b32 v34, v32
v_cmp_gt_u32 vcc, 8, v3
s_and_saveexec_b64 s[36:37], vcc''')
for t in range(4):
    a(f'v_cvt_pk_bf16_f32 v{16+2*t}, v{D2+4*t}, v{D2+4*t+1}\nv_cvt_pk_bf16_f32 v{17+2*t}, v{D2+4*t+2}, v{D2+4*t+3}')
    a(f'ds_write_b64 v10, v[{16+2*t}:{17+2*t}] offset:{32*t}')
a(f'''s_mov_b64 exec, s[36:37]
s_waitcnt lgkmcnt(0)
ds_read_b128 v[16:19], v11
s_waitcnt lgkmcnt(0)
buffer_store_dwordx4 v[16:19], v12, {WS}, s24 offen {SC1}
v_cmp_gt_u32 vcc, 8, v0
s_and_saveexec_b64 s[36:37], vcc
buffer_store_dwordx2 v[34:35], v9, {WS}, s25 offen {SC1}
s_mov_b64 exec, s[36:37]''')
nstamp('c_st')
a(BAR)
nstamp('c_done')
if UVC=='0': stage_o()
a(f'''v_lshrrev_b32 v4, 3, v0
v_and_b32 v5, 7, v0
v_lshlrev_b32 v6, 10, v4
v_lshl_add_u32 v6, v5, 4, v6
s_lshl_b32 s24, s30, 16
s_lshl_b32 s26, s31, 7
s_add_u32 s24, s24, s26
s_add_u32 s24, s24, {PART}
v_and_b32 v1, 63, v0
v_lshlrev_b32 v7, 3, v1
s_lshl_b32 s25, s30, 9
s_add_u32 s25, s25, {STAT}''')
gather([f'buffer_load_dwordx2 v[40:41], v7, {WS}, s25 offen', f'buffer_load_dwordx4 v[16:19], v6, {WS}, s24 offen'], [40,41,16,17,18,19], 4)
nstamp('d_gath')
if G2=='d':
    a(f's_cmp_lt_u32 s2, {G0}\ns_cbranch_scc1 C_NOG2')
    gload2()
    a.label('C_NOG2')
if UVC=='2': stage_o()
a('v_mov_b32 v42, v40')
wave_allreduce('v_max_f32',[42],[43])
a(f'''v_sub_f32 v40, v40, v42
v_mul_f32 v40, {LOG2E}, v40
v_exp_f32 v40, v40
s_nop 0
v_mul_f32 v41, v41, v40''')
wave_allreduce('v_add_f32',[41],[43])
a('''v_rcp_f32 v41, v41
v_lshlrev_b32 v42, 2, v4
v_mul_f32 v40, v40, v41
s_nop 0
ds_bpermute_b32 v40, v42, v40
s_waitcnt lgkmcnt(0)''')
mul8(acc,16,40,True)
red8_w(acc,0)
a('v_lshlrev_b32 v3, 2, v4')
a(BAR)
sum8_lds(0,256,40,3)
acc16=list(range(16,32))
mulN(acc16,WUV,8,40)
halve16(acc16,['row_ror:8'])
a(f'''s_lshl_b32 s3, s39, 9
v_lshlrev_b32 v1, 6, v5
v_add_u32 v1, s3, v1
v_bfe_u32 v2, v0, 4, 2
v_lshl_add_u32 v1, v2, 4, v1
ds_write_b128 v1, v[16:19] offset:4096
s_waitcnt lgkmcnt(0)''')
a(BAR)
nstamp('d_done')
a(f'''v_lshrrev_b32 v1, 7, v0
v_lshlrev_b32 v1, 12, v1
v_and_b32 v2, 127, v0
v_lshl_add_u32 v1, v2, 2, v1
s_lshr_b32 s3, s2, 5
s_lshl_b32 s3, s3, 14
s_add_u32 s3, s3, {CP}''')
if CPT:
    a('v_lshlrev_b32 v1, 5, v0')
    gather([f'buffer_load_dwordx4 v[16:19], v1, {WS}, s3 offen', f'buffer_load_dwordx4 v[20:23], v1, {WS}, s3 offen offset:16'], range(16,24))
else:
    gather([f'buffer_load_dword v{16+j}, v1, {WS}, s3 offen offset:{512*j}' for j in range(8)], range(16,24), 8)
nstamp('e_gath')
if G2=='e':
    a(f's_cmp_lt_u32 s2, {G0}\ns_cbranch_scc1 C_NOG2')
    gload2()
    a.label('C_NOG2')
sum8r(16)
bf16r(16,16)
a(f'''v_lshlrev_b32 v1, 2, v0
ds_write_b32 v1, v16 offset:8192
v_lshrrev_b32 v3, 1, v0
v_lshlrev_b32 v3, 2, v3
s_waitcnt lgkmcnt(0)''')
a(BAR)
a('ds_read_b32 v40, v3 offset:8192\nds_read_b32 v41, v3 offset:9216\ns_waitcnt lgkmcnt(0)')
mul8(acc,WO,40,True); mul8(acc,WO+4,41,False)
c0,c1=halve8(acc)
for ctl in ['row_ror:8','row_ror:4','row_ror:2']:
    a.nop(2); dpp('v_add_f32',c0,c0,c0,ctl); dpp('v_add_f32',c1,c1,c1,ctl)
a(f'''s_lshl_b32 s3, s39, 6
v_and_b32 v5, 1, v0
v_lshlrev_b32 v3, 5, v5
v_add_u32 v3, s3, v3
v_bfe_u32 v5, v0, 4, 1
v_lshl_add_u32 v3, v5, 3, v3
v_bfe_u32 v5, v0, 5, 1
v_lshl_add_u32 v3, v5, 4, v3
ds_write_b64 v3, v[{c0}:{c1}] offset:12288
s_waitcnt lgkmcnt(0)''')
a(BAR)
nstamp('e_done')
a(f'''s_cmp_lt_u32 s2, {H0}
s_cbranch_scc1 K_TS
v_lshlrev_b32 v1, 4, v0
v_add_u32 v1, {MGL}, v1
ds_read_b128 v[{MG}:{MG+3}], v1
s_cmp_lt_u32 s2, {G0}
s_cbranch_scc1 H_GO''')
if G1=='e': gload1()
a(f'''v_lshlrev_b32 v1, 2, v0
s_mov_b32 s3, {OP}
s_add_u32 s24, s3, 4096
s_add_u32 s25, s3, 8192
s_add_u32 s26, s3, 12288''')
if OPT:
    a('v_lshlrev_b32 v2, 5, v0')
    gather([f'buffer_load_dwordx4 v[16:19], v2, {WS}, s3 offen', f'buffer_load_dwordx4 v[20:23], v2, {WS}, s3 offen offset:16'], range(16,24))
else:
    gather([f'buffer_load_dword v{16+k}, v1, {WS}, s{3 if k<2 else 23+k//2} offen offset:{2048*(k%2)}' for k in range(8)], range(16,24), 8)
nstamp('g_gath')
if G2=='g': gload2()
sum8r(16)
bf16r(16,16)
a(f's_waitcnt lgkmcnt(0)\nv_mul_f32 v16, v16, v{MG}')
bf16r(16,16)
a(f'v_lshlrev_b32 v17, 16, v{XE}\nv_add_f32 v16, v16, v17')
bf16r(16,16)
a(f's_lshl_b32 s3, s39, 3\nv_mov_b32 v3, s3\nv_mov_b32 v2, 0')
def ln_stat_wg(x,slot,extra=None,extra2=None):
    a(f'v_mov_b32 v44, v{x}\nv_mul_f32 v45, v{x}, v{x}')
    wave_allreduce('v_add_f32',[44,45],[46,47])
    a(f'ds_write_b64 v3, v[44:45] offset:{slot}')
    if extra: a(extra)
    a(f'''s_waitcnt lgkmcnt(0)
    s_barrier
    ds_read_b128 v[20:23], v2 offset:{slot}
    ds_read_b128 v[24:27], v2 offset:{slot+16}
    ds_read_b128 v[28:31], v2 offset:{slot+32}
    ds_read_b128 v[32:35], v2 offset:{slot+48}''')
    if extra2: a(extra2)
    a(f'''s_waitcnt lgkmcnt(0)
    v_add_f32 v20, v20, v22
    v_add_f32 v21, v21, v23
    v_add_f32 v24, v24, v26
    v_add_f32 v25, v25, v27
    v_add_f32 v28, v28, v30
    v_add_f32 v29, v29, v31
    v_add_f32 v32, v32, v34
    v_add_f32 v33, v33, v35
    v_add_f32 v20, v20, v24
    v_add_f32 v21, v21, v25
    v_add_f32 v28, v28, v32
    v_add_f32 v29, v29, v33
    v_add_f32 v44, v20, v28
    v_add_f32 v45, v21, v29
    v_mul_f32 v44, 0x3b000000, v44
    v_mul_f32 v45, 0x3b000000, v45
    v_fma_f32 v45, -v44, v44, v45
    v_max_f32 v45, 0, v45''')
    ln_fin(44,45,46)
ln_stat_wg(16,8192)
a('v_sub_f32 v16, v16, v44')
bf16r(16,16)
div1(20,16,45,22,23)
bf16r(16,20)
a(f'v_mul_f32 v16, v16, v{MG+2}')
bf16r(16,16)
a(f'v_add_f32 v16, v16, v{MG+1}')
bf16r(16,16)
a('v_lshrrev_b32 v5, 2, v0\nv_lshlrev_b32 v5, 2, v5')
ln_stat_wg(16,8320,'ds_write_b32 v1, v16','\n'.join(f'ds_read_b32 v{36+q}, v5 offset:{512*q}' for q in range(4)))
nstamp('g_ln')
for q in range(4): a(f'v_sub_f32 v{36+q}, v{36+q}, v44')
bf16r2(36,37,36,37,20); bf16r2(38,39,38,39,20)
a('v_rcp_f32 v20, v45\ns_nop 0')
for q in range(4): a(f'v_mul_f32 v{24+q}, v{36+q}, v20')
for q in range(4): a(f'v_fma_f32 v{28+q}, -v{24+q}, v45, v{36+q}')
for q in range(4): a(f'v_fma_f32 v{28+q}, v{28+q}, v20, v{24+q}')
bf16r2(20,21,28,29,24); bf16r2(22,23,30,31,24)
if G2=='g': a('s_waitcnt vmcnt(16)')
for q in range(4): mul8(acc,W1+4*q,20+q,q==0)
c0,c1=halve8(acc)
for ctl in ['row_ror:8','row_ror:4']:
    a.nop(2); dpp('v_add_f32',c0,c0,c0,ctl); dpp('v_add_f32',c1,c1,c1,ctl)
a(f'''s_lshl_b32 s3, s39, 7
v_and_b32 v5, 3, v0
v_lshlrev_b32 v3, 5, v5
v_add_u32 v3, s3, v3
v_bfe_u32 v5, v0, 4, 1
v_lshl_add_u32 v3, v5, 3, v3
v_bfe_u32 v5, v0, 5, 1
v_lshl_add_u32 v3, v5, 4, v3
ds_write_b64 v3, v[{c0}:{c1}] offset:9216
s_lshr_b32 s28, s39, 2
s_lshl_b32 s28, s28, 4
v_add_u32 v3, s28, v0
v_and_b32 v3, 31, v3
v_lshlrev_b32 v3, 2, v3
ds_bpermute_b32 v45, v3, v{B1}
s_waitcnt lgkmcnt(0)
s_barrier''')
sum8_lds(9216,128,8,3)
bf16r(8,8)
a('v_lshlrev_b32 v45, 16, v45\nv_add_f32 v8, v8, v45')
bf16r(8,8)
a('''v_mul_f32 v9, v8, v8
v_mov_b32 v10, 0x3d372713
v_fma_f32 v9, v9, v10, 1.0
v_mul_f32 v9, v9, v8
v_mul_f32 v9, 0xc0135761, v9
v_exp_f32 v9, v9
s_nop 0
v_add_f32 v9, 1.0, v9
v_rcp_f32 v9, v9
s_nop 0
v_mul_f32 v8, v8, v9''')
bf16r(8,8)
a('s_nop 0')
for k in range(16): a(f'v_readlane_b32 s{80+k}, v8, {k}')
a('s_waitcnt vmcnt(0)')
for d in range(16):
    a(f'v_lshlrev_b32 v44, 16, v{W2+d}\nv_and_b32 v45, 0xffff0000, v{W2+d}')
    op='v_mul_f32' if d==0 else 'v_fmac_f32'
    a(f'{op} v42, s{80+d}, v44\n{op} v43, s{80+d}, v45')
a(f'''v_and_b32 v1, 255, v0
v_lshlrev_b32 v1, 3, v1
s_cmp_lt_u32 s39, 4
s_cbranch_scc1 G_LO
ds_write_b64 v1, v[42:43] offset:10240
s_waitcnt lgkmcnt(0)
s_barrier
s_branch K_TS''')
a.label('G_LO')
a(f'''s_barrier
ds_read_b64 v[44:45], v1 offset:10240
s_lshl_b32 s3, s76, 11
s_add_u32 s3, s3, {O2P}
s_waitcnt lgkmcnt(0)
v_add_f32 v42, v42, v44
v_add_f32 v43, v43, v45
buffer_store_dwordx2 v[42:43], v1, {WS}, s3 offen {SC1}''')
nstamp('g_done')
a('s_branch K_TS')
a.label('H_GO')
a(f'''s_sub_u32 s28, s2, {H0}
v_lshrrev_b32 v4, 4, v0
v_and_b32 v5, 15, v0
v_lshlrev_b32 v1, 11, v4
v_lshl_add_u32 v1, v5, 4, v1
s_lshl_b32 s3, s28, 8
s_add_u32 s24, s3, {OP}
s_add_u32 s25, s3, {O2P}
s_add_u32 s26, s25, 65536''')
for r in list(range(16,20))+list(range(24,28)): a(f'v_mov_b32 v{r}, 0')
if OPT:
    a(f'''s_cmp_lg_u32 s39, 0
    s_cbranch_scc1 H_SK0
    v_lshlrev_b32 v2, 5, v0
    s_lshl_b32 s3, s28, 11
    s_add_u32 s3, s3, {OP}''')
    gather([f'buffer_load_dwordx4 v[48:51], v2, {WS}, s3 offen', f'buffer_load_dwordx4 v[52:55], v2, {WS}, s3 offen offset:16'], range(48,56))
    sum8r(48)
else:
    a('s_cmp_ge_u32 s39, 2\ns_cbranch_scc1 H_SK0')
    gather([f'buffer_load_dwordx4 v[16:19], v1, {WS}, s24 offen'], range(16,20))
a.label('H_SK0')
def red4(regs,off):
    for sw in ['v_permlane16_swap_b32','v_permlane32_swap_b32']:
        for i,r in enumerate(regs): a(f'v_mov_b32 v{44+i}, v{r}')
        a.nop(1)
        for i,r in enumerate(regs): a(f'{sw} v{r}, v{44+i}')
        a.nop(1)
        for i,r in enumerate(regs): a(f'v_add_f32 v{r}, v{r}, v{44+i}')
    a(f's_lshl_b32 s3, s39, 8\nv_lshl_add_u32 v2, v5, 4, s3\nds_write_b128 v2, v[{regs[0]}:{regs[3]}] offset:{off}')
if not OPT: red4([16,17,18,19],0)
a(f'''v_lshlrev_b32 v6, 4, v0
s_waitcnt lgkmcnt(0)
v_mov_b32 v16, v{MG}
v_mov_b32 v17, v{MG+3}
v_lshlrev_b32 v18, 16, v{XE}
v_lshlrev_b32 v19, 16, v{B2}
ds_write_b128 v6, v[16:19] offset:4096
v_cmp_gt_u32 vcc, {NG5-32}, v4
s_and_saveexec_b64 s[34:35], vcc
s_cbranch_execz H_SK''')
gather([f'buffer_load_dwordx4 v[24:27], v1, {WS}, s26 offen'], range(24,28))
a.label('H_SK')
a('s_mov_b64 exec, s[34:35]')
gather([f'buffer_load_dwordx4 v[20:23], v1, {WS}, s25 offen'], range(20,24), 8)
nstamp('h_gath')
for c_ in range(4): a(f'v_add_f32 v{20+c_}, v{20+c_}, v{24+c_}')
red4([20,21,22,23],2048)
a(f'''s_waitcnt lgkmcnt(0)
s_barrier
s_cmp_lg_u32 s39, 0
s_cbranch_scc1 K_TS
s_lshl_b32 s3, s28, 10
v_add_u32 v2, s3, v6
ds_read_b128 v[24:27], v2 offset:4096
v_lshlrev_b32 v1, 2, v0''')
if OPT: a('v_mov_b32 v16, v48')
else: sum8_lds(0,256,16,1)
sum8_lds(2048,256,17,1)
bf16r2(16,17,16,17,20)
a('v_mul_f32 v16, v16, v24\nv_add_f32 v17, v17, v27')
bf16r2(16,17,16,17,20)
a('v_add_f32 v16, v16, v26\nv_mul_f32 v17, v17, v25')
bf16r2(16,17,16,17,20)
srdp(S_A,13,1024)
a(f'''v_add_f32 v16, v16, v17
v_cvt_pk_bf16_f32 v16, v16, v16
v_lshlrev_b32 v1, 1, v0
s_lshl_b32 s3, s28, 7
buffer_store_short v16, v1, {SA}, s3 offen''')
if DBGT:
    srdp(S_DBG,14,256)
    a(f'''s_memrealtime s[100:101]
    s_waitcnt lgkmcnt(0)
    s_sub_u32 s100, s100, s72
    v_mov_b32 v2, s100
    s_lshl_b32 s3, s28, 2
    v_mov_b32 v3, 0
    v_cmp_eq_u32 vcc, 0, v0
    s_and_saveexec_b64 s[36:37], vcc
    buffer_store_dword v2, v3, {SD}, s3 offen offset:16''')
a.label('K_TS')
tsend(); a('s_endpgm')
a.label('AUX')
a(f'''v_subrev_u32 v0, 512, v0
v_and_b32 v11, 63, v0
v_lshlrev_b32 v11, 4, v11
s_lshl_b32 s3, s32, 8
v_lshl_add_u32 v6, v0, 1, s3
s_waitcnt lgkmcnt(0)''')
srdp(S_WS,15,WSBYTES); srdp(S_DBG,14,256); srdp(S_X,0,1024)
a(f'''buffer_load_dwordx4 v[56:59], v11, {SX}, 0 offen
buffer_load_ushort v46, v6, {SX}, 0 offen
s_cmp_lt_u32 s2, 192
s_cbranch_scc1 X_NOINIT
s_cmp_ge_u32 s2, 208
s_cbranch_scc1 X_NOINIT
s_barrier
s_cmp_ge_u32 s2, 198
s_cbranch_scc1 X_NOINIT
s_barrier''')
a.label('X_NOINIT')
a('s_waitcnt vmcnt(0)')
if TLB!='0':
    a(f's_cmp_lg_u32 s39, 9\ns_cbranch_scc1 X_NOTLB\ns_cmp_ge_u32 s2, {TLB}\ns_cbranch_scc1 X_NOTLB\nv_lshlrev_b32 v12, 12, v11')
    for i,(idx,nb) in enumerate([(1,4194304),(4,4194304),(5,4194304),(3,4194304),(7,512*2752),(9,1376*1024)]):
        srdp(S_A,idx,nb)
        a(f'buffer_load_dword v{72+i}, v12, {SA}, 0 offen')
    a.label('X_NOTLB')
x8=list(range(60,68)); unpack8(x8,56)
ln_stats(x8,44,45,47)
a('v_lshlrev_b32 v46, 16, v46\nv_sub_f32 v46, v46, v44')
bf16r(46,46)
div1(18,46,45,20,21)
bf16r(46,18)
a(f'''v_lshlrev_b32 v1, 2, v0
s_cmp_lg_u32 s39, 8
s_cbranch_scc1 X_B1''')
l0=L('WA'); l1=L('WD')
a('s_mov_b32 s38, 0\nv_min_u32 v71, 5, v0\nv_lshlrev_b32 v71, 2, v71')
a.label(l0)
a(f'''buffer_load_dword v70, v71, {SD}, 0 offen offset:128 {SC1}
s_add_u32 s38, s38, 1
s_waitcnt vmcnt(0)
v_cmp_eq_u32 vcc, 0, v70
s_cmp_gt_u32 s38, 0x40000
s_cbranch_scc1 {l1}
s_nop 2
s_cmp_eq_u64 vcc, 0
s_cbranch_scc1 {l1}
s_sleep {DSL}
s_branch {l0}''')
a.label(l1)
a.label('X_B1')
a(BAR)
a(f'''s_cmp_ge_u32 s2, 192
s_cbranch_scc1 X_A
s_cmp_lg_u32 s39, 8
s_cbranch_scc1 X_A''')
sum8_lds(0,256,8,1)
a(f'''s_mul_i32 s3, s32, 12288
s_lshl_b32 s28, s33, 8
s_add_u32 s3, s3, s28
buffer_store_dword v8, v1, {WS}, s3 offen offset:{MODP} {SC1}''')
a.label('X_A')
if not DMA0: a(BAR)
a('v_lshlrev_b32 v6, 1, v6\ns_mov_b32 s25, 12288\ns_mov_b32 s26, 24576\ns_mov_b32 s27, 36864')
gather([f'buffer_load_dword v{16+2*p+k}, v6, {WS}, {"0" if p==0 else "s%d"%(24+p)} offen offset:{MODP+k*2048}' for p in range(4) for k in range(2)], range(16,24), 8)
a('''v_add_f32 v16, v16, v18
v_add_f32 v20, v20, v22
v_add_f32 v17, v17, v19
v_add_f32 v21, v21, v23
v_add_f32 v16, v16, v20
v_add_f32 v17, v17, v21''')
bf16r2(16,17,16,17,47)
a('v_add_f32 v17, 1.0, v17')
bf16r(17,17)
a('v_mul_f32 v18, v46, v17')
bf16r(18,18)
a('v_add_f32 v18, v18, v16')
bf16r(18,18)
a('ds_write_b32 v1, v18 offset:4096\ns_waitcnt lgkmcnt(0)')
a(BAR)
a('s_cmp_lg_u32 s39, 8\ns_cbranch_scc1 X_PI')
poll_dbg(0,16)
a('s_branch X_B3')
a.label('X_PI')
a(f'''v_mov_b32 v16, -1
v_mov_b32 v17, -1
v_mov_b32 v18, -1
v_mov_b32 v19, -1
v_and_b32 v11, 63, v0
v_lshlrev_b32 v11, 4, v11
s_lshr_b32 s3, s2, 6
s_lshl_b32 s3, s3, 19
s_and_b32 s28, s2, 63
s_lshl_b32 s28, s28, 10
s_add_u32 s3, s3, s28
s_add_u32 s3, s3, {PART}''')
for q in range(8):
    a(f'buffer_store_dwordx4 v[16:19], v11, {WS}, s3 offen {SC1}')
    if q<7: a('s_add_u32 s3, s3, 65536')
a.label('X_B3')
a(BAR)
a('s_cmp_lg_u32 s39, 8\ns_cbranch_scc1 X_Q')
sum8_lds(2048,256,8,1)
a(f'''s_lshl_b32 s3, s2, 8
s_add_u32 s3, s3, {QP}
buffer_store_dword v8, v1, {WS}, s3 offen {SC1}''')
a.label('X_Q')
if not DMA0: a(BAR)
a(f'''v_and_b32 v7, 63, v0
v_lshlrev_b32 v7, 2, v7
s_lshl_b32 s3, s30, 11
s_sub_u32 s28, s39, 8
s_lshl_b32 s28, s28, 10
s_add_u32 s3, s3, s28
s_add_u32 s3, s3, {QP}''')
gather([f'buffer_load_dword v{16+m}, v7, {WS}, s3 offen offset:{256*m}' for m in range(4)], range(16,20), 8)
a('''v_add_f32 v16, v16, v17
v_add_f32 v18, v18, v19
v_add_f32 v16, v16, v18''')
bf16r(16,16)
a('ds_write_b32 v1, v16 offset:4608\ns_waitcnt lgkmcnt(0)')
a(BAR)
a(BAR)
a(BAR)
a(BAR)
a(f'''s_cmp_lt_u32 s2, {H0}
s_cbranch_scc1 X_MGD
s_mov_b32 s24, 4096
s_mov_b32 s25, {4096+12288}
s_mov_b32 s26, {4096+24576}
s_mov_b32 s27, {4096+36864}
v_add_u32 v6, 4096, v1''')
gather([f'buffer_load_dword v{72+16*rr+4*p+k}, v{1 if k<2 else 6}, {WS}, s{24+p} offen offset:{MODP+(k%2)*2048+512*rr}' for rr in range(4) for p in range(4) for k in range(4)], range(72,136))
for rr in range(4):
    b=72+16*rr
    for k in range(4): a(f'v_add_f32 v{b+k}, v{b+k}, v{b+4+k}\nv_add_f32 v{b+8+k}, v{b+8+k}, v{b+12+k}\nv_add_f32 v{b+k}, v{b+k}, v{b+8+k}')
    bf16r2(b,b+1,b,b+1,20); bf16r2(b+2,b+3,b+2,b+3,20)
    a(f'v_add_f32 v{b+2}, 1.0, v{b+2}')
    bf16r(b+2,b+2)
    a(f'v_lshlrev_b32 v7, 2, v1\nv_add_u32 v7, {MGL+2048*rr}, v7\nds_write_b128 v7, v[{b}:{b+3}]')
a('s_waitcnt lgkmcnt(0)')
a.label('X_MGD')
a(BAR)
a(BAR)
a(BAR)
sum8_lds(4096,512,8,1)
if CPT:
    a(f'''s_lshl_b32 s3, s30, 12
    s_lshl_b32 s28, s31, 2
    s_add_u32 s3, s3, s28
    s_add_u32 s3, s3, {CP}
    v_lshlrev_b32 v2, 5, v0
    buffer_store_dword v8, v2, {WS}, s3 offen {SC1}''')
else:
    a(f'''s_lshl_b32 s3, s2, 9
    s_add_u32 s3, s3, {CP}
    buffer_store_dword v8, v1, {WS}, s3 offen {SC1}''')
a(BAR)
a(BAR)
a(f'''s_cmp_lg_u32 s39, 8
s_cbranch_scc1 X_END
v_cmp_gt_u32 vcc, 16, v0
s_and_saveexec_b64 s[36:37], vcc''')
sum8_lds(12288,64,8,1)
if OPT:
    a(f'''s_lshr_b32 s3, s2, 5
    s_lshl_b32 s3, s3, 2
    s_and_b32 s28, s2, 7
    s_lshl_b32 s28, s28, 11
    s_add_u32 s3, s3, s28
    s_bfe_u32 s28, s2, 0x20003
    s_lshl_b32 s28, s28, 9
    s_add_u32 s3, s3, s28
    s_add_u32 s3, s3, {OP}
    v_lshlrev_b32 v2, 5, v0
    buffer_store_dword v8, v2, {WS}, s3 offen {SC1}''')
else:
    a(f'''s_lshr_b32 s3, s2, 5
    s_lshl_b32 s3, s3, 11
    s_and_b32 s28, s2, 7
    s_lshl_b32 s28, s28, 8
    s_add_u32 s3, s3, s28
    s_bfe_u32 s28, s2, 0x20003
    s_lshl_b32 s28, s28, 6
    s_add_u32 s3, s3, s28
    s_add_u32 s3, s3, {OP}
    buffer_store_dword v8, v1, {WS}, s3 offen {SC1}''')
a.label('X_END')
a.label('K_END'); a('s_endpgm')

KD=f'''.amdhsa_kernel {KN}
  .amdhsa_next_free_vgpr 160
  .amdhsa_next_free_sgpr 102
  .amdhsa_accum_offset 160
  .amdhsa_group_segment_fixed_size 0
  .amdhsa_kernarg_size 128
  .amdhsa_user_sgpr_count 2
  .amdhsa_user_sgpr_kernarg_segment_ptr 1
  .amdhsa_system_sgpr_workgroup_id_x 1
.end_amdhsa_kernel'''
out=[l for l in HDR if l.startswith(';') and '@launch' not in l and 'Override' not in l and 'grid=ceil' not in l]
out.append(f'; @launch grid=(256,1,1) block=(640,1,1) lds={LDS}')
out.append('.amdgcn_target "amdgcn-amd-amdhsa--gfx950"\n.text')
out+=a.L
out.append('.section .rodata,"a"\n.p2align 6\n'+KD)
dst=sys.argv[1] if len(sys.argv)>1 else 'cdna_kernels/%s.s'%NAME
open(dst,'w').write('\n'.join(out)+'\n')
print('wrote',dst,len(a.L),'lines')
```

```python
import sys, os
NAME='adaLN_cond__compressed_kv_cla__mixer_channel_mlp__decode'
HDR=open('cdna_kernels/%s.s.ref'%NAME).read().split('\n')
KN=NAME+'_kernel'
TS=os.environ.get('TS','0')=='1'
NST=os.environ.get('NST','').split(',')
SLP=os.environ.get('SLP','1')
DSL=os.environ.get('DSL','2')
SC1='sc1'
DMA0=os.environ.get('DMA0','0')=='1'
WQLM=os.environ.get('WQL','2')
EDMA=os.environ.get('EDMA','0')=='1'
WQL=WQLM!='0'
TLB=os.environ.get('TLB','0')
OPT=os.environ.get('OPT','0')=='1'
CPT=os.environ.get('CPT','0')=='1'
UVC=os.environ.get('UVC','0')
MODP=0x0
QP=0x10000
QA=0x20000
STAT=0x30000
CP=0x40000
OP=0x60000
O2P=0x70000
PART=0x100000
TSOFF=0x500000
WSBYTES=0x600000
XCH=0; RB=16384; REG=64*128; MGL=RB+8*REG; SC2=MGL+8192; LDS=SC2+2048
NG5=43; G0=213; H0=205
WQ=72; WUK=80; WUV=88; WO=96; TSV=104; VDMA=119; XE=120; B1=121; B2=122; VRED=123; MG=124; W1=128; W2=144
S_WS=4; S_DBG=8; S_X=12; S_A=16; S_B=20; S_C=96; P=40
LOG2E='0x3fb8aa3b'
WS=f's[{S_WS}:{S_WS+3}]'
SA=f's[{S_A}:{S_A+3}]'; SB=f's[{S_B}:{S_B+3}]'; SC=f's[{S_C}:{S_C+3}]'; SX=f's[{S_X}:{S_X+3}]'; SD=f's[{S_DBG}:{S_DBG+3}]'

class A:
    def __init__(s): s.L=[]
    def __call__(s,x):
        for l in x.strip('\n').split('\n'): s.L.append('    '+l.strip())
    def label(s,x): s.L.append(x+':')
    def nop(s,n):
        while n>0:
            k=min(n,16); s('s_nop %d'%(k-1)); n-=k
a=A()
def srd(d,lo,hi,nbytes):
    a(f's_mov_b32 s{d}, s{lo}\ns_mov_b32 s{d+1}, s{hi}\ns_mov_b32 s{d+2}, {nbytes}\ns_mov_b32 s{d+3}, 0x20000')
def srdp(d,i,n): srd(d,P+2*i,P+2*i+1,n)
def dpp(op,d,s0,s1,ctl): a(f'{op}_dpp v{d}, v{s0}, v{s1} {ctl} row_mask:0xf bank_mask:0xf')
def wave_allreduce(op, regs, tmps):
    for ctl in ['row_ror:8','row_ror:4','row_ror:2','row_ror:1']:
        a.nop(2 if len(regs)<3 else 1)
        for r in regs: dpp(op,r,r,r,ctl)
    for sw in ['v_permlane16_swap_b32','v_permlane32_swap_b32']:
        for r,t in zip(regs,tmps): a(f'v_mov_b32 v{t}, v{r}')
        a.nop(2)
        for r,t in zip(regs,tmps): a(f'{sw} v{r}, v{t}')
        a.nop(1)
        for r,t in zip(regs,tmps): a(f'{op} v{r}, v{r}, v{t}')
def bf16r(d,s_): a(f'v_cvt_pk_bf16_f32 v{d}, v{s_}, v{s_}\nv_lshlrev_b32 v{d}, 16, v{d}')
def bf16r2(d0,d1,s0,s1,t): a(f'v_cvt_pk_bf16_f32 v{t}, v{s0}, v{s1}\nv_lshlrev_b32 v{d0}, 16, v{t}\nv_and_b32 v{d1}, 0xffff0000, v{t}')
def halve8(acc):
    a.nop(2)
    for i in range(4): a(f'v_permlane32_swap_b32 v{acc[i]}, v{acc[i+4]}')
    a.nop(1)
    for i in range(4): a(f'v_add_f32 v{acc[i]}, v{acc[i]}, v{acc[i+4]}')
    a.nop(1)
    for i in range(2): a(f'v_permlane16_swap_b32 v{acc[i]}, v{acc[i+2]}')
    a.nop(1)
    for i in range(2): a(f'v_add_f32 v{acc[i]}, v{acc[i]}, v{acc[i+2]}')
    return acc[0],acc[1]
def halve16(acc, rors):
    a.nop(2)
    for i in range(8): a(f'v_permlane32_swap_b32 v{acc[i]}, v{acc[i+8]}')
    a.nop(1)
    for i in range(8): a(f'v_add_f32 v{acc[i]}, v{acc[i]}, v{acc[i+8]}')
    a.nop(1)
    for i in range(4): a(f'v_permlane16_swap_b32 v{acc[i]}, v{acc[i+4]}')
    a.nop(1)
    for i in range(4): a(f'v_add_f32 v{acc[i]}, v{acc[i]}, v{acc[i+4]}')
    for ctl in rors:
        for i in range(4): dpp('v_add_f32',acc[i],acc[i],acc[i],ctl)
    return acc[:4]
def mul8(acc,w,sc,first,t0=42,t1=43):
    for k in range(4):
        a(f'v_lshlrev_b32 v{t0}, 16, v{w+k}\nv_and_b32 v{t1}, 0xffff0000, v{w+k}')
        op='v_mul_f32' if first else 'v_fmac_f32'
        a(f'{op} v{acc[2*k]}, v{sc}, v{t0}\n{op} v{acc[2*k+1]}, v{sc}, v{t1}')
def mulN(acc,w,n,sc,t0=42,t1=43):
    for k in range(n):
        a(f'v_lshlrev_b32 v{t0}, 16, v{w+k}\nv_and_b32 v{t1}, 0xffff0000, v{w+k}\nv_mul_f32 v{acc[2*k]}, v{sc}, v{t0}\nv_mul_f32 v{acc[2*k+1]}, v{sc}, v{t1}')
def ln_fin(vm,vs,t0):
    bf16r2(vm,vs,vm,vs,t0)
    a(f'v_add_f32 v{vs}, 0x3727c5ac, v{vs}')
    bf16r(vs,vs)
    a(f'v_sqrt_f32 v{vs}, v{vs}\ns_nop 0')
    bf16r(vs,vs)
def ln_stats(x8, vm, vs, t0):
    a(f'v_add_f32 v{vm}, v{x8[0]}, v{x8[1]}')
    for k in range(2,8): a(f'v_add_f32 v{vm}, v{vm}, v{x8[k]}')
    wave_allreduce('v_add_f32',[vm],[t0])
    a(f'v_mul_f32 v{vm}, 0x3b000000, v{vm}\nv_mov_b32 v{vs}, 0')
    for k in range(8): a(f'v_sub_f32 v{t0}, v{x8[k]}, v{vm}\nv_fmac_f32 v{vs}, v{t0}, v{t0}')
    wave_allreduce('v_add_f32',[vs],[t0])
    a(f'v_mul_f32 v{vs}, 0x3b000000, v{vs}')
    ln_fin(vm,vs,t0)
def div1(d,n,den,t0,t1):
    a(f'''v_rcp_f32 v{t0}, v{den}
    s_nop 0
    v_mul_f32 v{t1}, v{n}, v{t0}
    v_fma_f32 v{d}, -v{t1}, v{den}, v{n}
    v_fma_f32 v{d}, v{d}, v{t0}, v{t1}''')
def unpack8(dst, src):
    for k in range(4): a(f'v_and_b32 v{dst[2*k+1]}, 0xffff0000, v{src+k}\nv_lshlrev_b32 v{dst[2*k]}, 16, v{src+k}')
def sum8r(b):
    a(f'''v_add_f32 v{b}, v{b}, v{b+1}
    v_add_f32 v{b+2}, v{b+2}, v{b+3}
    v_add_f32 v{b+4}, v{b+4}, v{b+5}
    v_add_f32 v{b+6}, v{b+6}, v{b+7}
    v_add_f32 v{b}, v{b}, v{b+2}
    v_add_f32 v{b+4}, v{b+4}, v{b+6}
    v_add_f32 v{b}, v{b}, v{b+4}''')
def sum8_lds(off,stride,dst,addr):
    for w in range(8): a(f'ds_read_b32 v{8+w}, v{addr} offset:{off+w*stride}')
    a('s_waitcnt lgkmcnt(0)')
    sum8r(8)
    if dst!=8: a(f'v_mov_b32 v{dst}, v8')
lid=[0]
def L(p):
    lid[0]+=1; return f'{p}{lid[0]}'
def nstamp(nm):
    if TS and nm in NST:
        i=1+NST.index(nm)
        a(f's_memrealtime s[100:101]\ns_waitcnt lgkmcnt(0)\nv_mov_b32 v{TSV+2*i}, s100\nv_mov_b32 v{TSV+1+2*i}, s101')
def tsend():
    if not TS: return
    a(f'''s_waitcnt vmcnt(0)
    s_memrealtime s[100:101]
    s_mov_b64 exec, -1
    v_cmp_eq_u32 vcc, 0, v0
    s_and_saveexec_b64 s[36:37], vcc
    s_waitcnt lgkmcnt(0)
    v_mov_b32 v5, 0
    s_lshl_b32 s3, s2, 6
    s_add_u32 s3, s3, {TSOFF}
    v_mov_b32 v0, s100
    v_mov_b32 v1, s101
    v_mov_b32 v2, 0
    v_mov_b32 v3, 0
    buffer_store_dwordx4 v[{TSV}:{TSV+3}], v5, s[4:7], s3 offen
    buffer_store_dwordx4 v[{TSV+4}:{TSV+7}], v5, s[4:7], s3 offen offset:16
    buffer_store_dwordx4 v[{TSV+8}:{TSV+11}], v5, s[4:7], s3 offen offset:32
    buffer_store_dwordx4 v[0:3], v5, s[4:7], s3 offen offset:48''')
import re
PIPE=os.environ.get('PIPE','0')=='1'
def chk(r):
    r=list(r)
    if len(r)==1: a(f'v_mov_b32 v70, v{r[0]}'); i=1
    elif len(r)==2: a(f'v_max_u32 v70, v{r[0]}, v{r[1]}'); i=2
    else: a(f'v_max3_u32 v70, v{r[0]}, v{r[1]}, v{r[2]}'); i=3
    while i<len(r):
        if i+1<len(r): a(f'v_max3_u32 v70, v70, v{r[i]}, v{r[i+1]}'); i+=2
        else: a(f'v_max_u32 v70, v70, v{r[i]}'); i+=1
    a('v_cmp_eq_u32 vcc, -1, v70')
def shift_load(x,delta):
    m=re.match(r'(\S+) v\[(\d+):(\d+)\](.*)',x)
    if m: return f'{m.group(1)} v[{int(m.group(2))+delta}:{int(m.group(3))+delta}]{m.group(4)}'
    m=re.match(r'(\S+) v(\d+)(,.*)',x)
    return f'{m.group(1)} v{int(m.group(2))+delta}{m.group(3)}'
def gather(loads, regs, delta=None):
    l0=L('GA'); l1=L('GD'); l2=L('GB')
    regs=list(regs)
    if delta is None or not PIPE:
        a('s_mov_b32 s38, 0')
        a.label(l0)
        for x in loads: a(x+' '+SC1)
        a('s_add_u32 s38, s38, 1\ns_waitcnt vmcnt(0)')
        chk(regs)
        a(f'''s_cmp_gt_u32 s38, 0x40000
        s_cbranch_scc1 {l1}
        s_nop 2
        s_cmp_eq_u64 vcc, 0
        s_cbranch_scc1 {l1}
        s_sleep {SLP}
        s_branch {l0}''')
        a.label(l1)
        return
    n=len(loads); lb=[shift_load(x,delta) for x in loads]; rb=[r+delta for r in regs]
    a('s_mov_b32 s38, 0')
    for x in loads: a(x+' '+SC1)
    a('s_sleep 2')
    a.label(l0)
    for x in lb: a(x+' '+SC1)
    a(f's_add_u32 s38, s38, 1\ns_waitcnt vmcnt({n})')
    chk(regs)
    a(f'''s_cmp_gt_u32 s38, 0x40000
    s_cbranch_scc1 {l1}
    s_nop 2
    s_cmp_eq_u64 vcc, 0
    s_cbranch_scc1 {l1}''')
    for x in loads: a(x+' '+SC1)
    a(f's_waitcnt vmcnt({n})')
    chk(rb)
    a(f'''s_nop 4
    s_cmp_eq_u64 vcc, 0
    s_cbranch_scc0 {l0}
    s_waitcnt vmcnt(0)''')
    for r,q in zip(regs,rb): a(f'v_mov_b32 v{r}, v{q}')
    a.label(l1)
    a('s_waitcnt vmcnt(0)')
def poll_dbg(word,val):
    l0=L('WA'); l1=L('WD')
    a('s_mov_b32 s38, 0\nv_mov_b32 v71, 0')
    a.label(l0)
    a(f'''buffer_load_dword v70, v71, {SD}, 0 offen offset:{4*word} {SC1}
    s_add_u32 s38, s38, 1
    s_waitcnt vmcnt(0)
    v_readfirstlane_b32 s3, v70
    s_cmp_gt_u32 s38, 0x40000
    s_cbranch_scc1 {l1}
    s_cmp_ge_u32 s3, {val}
    s_cbranch_scc1 {l1}
    s_sleep {DSL}
    s_branch {l0}''')
    a.label(l1)
def red8_w(acc, off):
    c0,c1=halve8(acc)
    a.nop(2)
    dpp('v_add_f32',c0,c0,c0,'row_ror:8'); dpp('v_add_f32',c1,c1,c1,'row_ror:8')
    a(f'ds_write_b64 v{VRED}, v[{c0}:{c1}] offset:{off}\ns_waitcnt lgkmcnt(0)')
BAR='s_barrier'

a.L.append(f'.globl {KN}\n.p2align 8\n.type {KN},@function\n{KN}:')
if TS:
    a(f's_memrealtime s[100:101]\ns_waitcnt lgkmcnt(0)\nv_mov_b32 v{TSV}, s100\nv_mov_b32 v{TSV+1}, s101')
    for i in range(TSV+2,TSV+12): a(f'v_mov_b32 v{i}, 0')
DBGT=os.environ.get('DBGT','0')=='1'
if DBGT: a('s_memrealtime s[72:73]')
a(f'''s_cmp_ge_u32 s2, 256
s_cbranch_scc1 K_END
s_load_dwordx16 s[40:55], s[0:1], 0
s_load_dwordx16 s[56:71], s[0:1], 64
v_lshrrev_b32 v1, 6, v0
v_lshrrev_b32 v4, 3, v0
v_readfirstlane_b32 s39, v1
v_and_b32 v5, 7, v0
s_lshr_b32 s30, s2, 3
s_and_b32 s31, s2, 7
s_and_b32 s32, s2, 3
s_lshr_b32 s33, s2, 2
s_cmp_ge_u32 s39, 8
s_cbranch_scc1 AUX''')
a(f'''s_lshl_b32 s3, s32, 7
v_add_u32 v6, s3, v4
v_lshlrev_b32 v7, 1, v6
v_mul_u32_u24 v8, 0x1800, v6
v_lshl_add_u32 v8, v5, 4, v8
s_lshl_b32 s3, s33, 7
v_add_u32 v8, s3, v8
s_mov_b32 s34, 393216
v_lshlrev_b32 v9, 13, v6
v_lshl_add_u32 v9, v5, 4, v9
s_lshl_b32 s3, s30, 8
s_bfe_u32 s28, s2, 0x10002
s_lshl_b32 s28, s28, 7
s_add_u32 s3, s3, s28
v_add_u32 v9, s3, v9
s_mov_b32 s35, 0x80000
v_lshlrev_b32 v10, 13, v4
v_lshl_add_u32 v10, v5, 5, v10
s_lshl_b32 s3, s31, 19
s_lshl_b32 s28, s30, 8
s_add_u32 s74, s3, s28
v_lshlrev_b32 v12, 1, v0
s_lshl_b32 s3, s39, 8
v_lshlrev_b32 v{VRED}, 5, v5
v_add_u32 v{VRED}, s3, v{VRED}
v_bfe_u32 v2, v0, 4, 1
v_lshl_add_u32 v{VRED}, v2, 3, v{VRED}
v_bfe_u32 v2, v0, 5, 1
v_lshl_add_u32 v{VRED}, v2, 4, v{VRED}
s_and_b32 s77, s2, 63
s_lshr_b32 s78, s2, 6
v_and_b32 v1, 63, v0
v_lshrrev_b32 v2, 3, v1
v_and_b32 v3, 7, v1
v_xor_b32 v3, v3, v2
v_lshlrev_b32 v3, 4, v3
v_lshl_add_u32 v{VDMA}, v2, 10, v3
s_lshl_b32 s3, s39, 7
s_lshl_b32 s29, s77, 16
s_add_u32 s29, s29, s3
s_mul_i32 s79, s39, {REG}
s_add_u32 s79, s79, {RB}
s_sub_u32 s76, s2, {G0}
s_waitcnt lgkmcnt(0)''')
srdp(S_WS,15,WSBYTES); srdp(S_X,0,1024); srdp(S_A,12,3145728); srdp(S_B,11,1024)
a('s_cmp_lt_u32 s2, 192\ns_cbranch_scc1 C_MLD\ns_cmp_ge_u32 s2, 208\ns_cbranch_scc1 C_NOM')
srdp(S_DBG,14,256)
a(f'''s_sub_u32 s28, s2, 192
v_lshlrev_b32 v1, 4, v0
v_mov_b32 v16, -1
v_mov_b32 v17, -1
v_mov_b32 v18, -1
v_mov_b32 v19, -1
v_mov_b32 v20, 1
v_mov_b32 v21, 0
s_lshl_b32 s3, s28, 13
s_cmp_ge_u32 s28, 6
s_cbranch_scc1 C_INIT2
buffer_store_dwordx4 v[16:19], v1, {WS}, s3 offen {SC1}
s_waitcnt vmcnt(0)''')
nstamp('i_ack')
a(f'''s_barrier
v_cmp_eq_u32 vcc, 0, v0
s_and_saveexec_b64 s[36:37], vcc
s_lshl_b32 s24, s28, 2
buffer_store_dword v20, v21, {SD}, s24 offen offset:128 {SC1}
s_mov_b64 exec, s[36:37]''')
if TS and 'i_at' in NST: a('s_waitcnt vmcnt(0)')
nstamp('i_at')
a.label('C_INIT2')
a(f'''s_lshl_b32 s3, s28, 15
s_add_u32 s3, s3, 0x10000
buffer_store_dwordx4 v[16:19], v1, {WS}, s3 offen {SC1}
s_add_u32 s3, s3, 8192
buffer_store_dwordx4 v[16:19], v1, {WS}, s3 offen {SC1}
s_add_u32 s3, s3, 8192
buffer_store_dwordx4 v[16:19], v1, {WS}, s3 offen {SC1}
s_add_u32 s3, s3, 8192
buffer_store_dwordx4 v[16:19], v1, {WS}, s3 offen {SC1}
s_waitcnt vmcnt(0)
s_barrier
v_cmp_eq_u32 vcc, 0, v0
s_and_saveexec_b64 s[36:37], vcc
buffer_atomic_add v20, v21, {SD}, 0 offen
s_mov_b64 exec, s[36:37]
s_branch C_NOM''')
a.label('C_MLD')
a(f'''buffer_load_ushort v24, v7, {SB}, 0 offen
buffer_load_ushort v25, v7, {SB}, 0 offen offset:128
buffer_load_dwordx4 v[32:35], v8, {SA}, 0 offen
buffer_load_dwordx4 v[36:39], v8, {SA}, s34 offen''')
a.label('C_NOM')
srdp(S_A,2,4194304); srdp(S_B,3,4194304); srdp(S_C,1,4194304)
def wqload(part=3):
    if part&1:
        srdp(S_A,2,4194304)
        a(f'''buffer_load_dwordx4 v[{WQ}:{WQ+3}], v9, {SA}, 0 offen
        buffer_load_dwordx4 v[{WQ+4}:{WQ+7}], v9, {SA}, s35 offen''')
    if part&2:
        srdp(S_B,3,4194304)
        a(f'''buffer_load_dwordx4 v[{WUK}:{WUK+3}], v10, {SB}, s74 offen
        buffer_load_dwordx4 v[{WUK+4}:{WUK+7}], v10, {SB}, s74 offen offset:16''')
if WQL: a('s_cmp_lt_u32 s2, 192\ns_cbranch_scc1 C_NOWQ')
wqload()
if WQL: a.label('C_NOWQ')
a(f'buffer_load_ushort v{XE}, v12, {SX}, 0 offen')
srdp(S_A,10,1024)
a(f'buffer_load_ushort v{B2}, v12, {SA}, 0 offen')
def dma(lo,hi):
    for i in range(lo,hi):
        a(f's_add_u32 m0, s79, {1024*i}\ns_add_u32 s3, s29, {8192*i}\nbuffer_load_dwordx4 v{VDMA}, {SC}, s3 offen lds')
def stage_uv():
    srdp(S_A,4,4194304); srdp(S_B,5,4194304)
    a(f'''v_lshrrev_b32 v4, 3, v0
    v_and_b32 v5, 7, v0
    v_lshlrev_b32 v10, 13, v4
    v_lshl_add_u32 v10, v5, 5, v10
    buffer_load_dwordx4 v[{WUV}:{WUV+3}], v10, {SA}, s74 offen
    buffer_load_dwordx4 v[{WUV+4}:{WUV+7}], v10, {SA}, s74 offen offset:16''')
def stage_o():
    a(f'''s_lshr_b32 s3, s2, 5
    s_lshl_b32 s3, s3, 19
    s_and_b32 s28, s2, 7
    s_lshl_b32 s28, s28, 7
    s_add_u32 s3, s3, s28
    s_bfe_u32 s28, s2, 0x20003
    s_lshl_b32 s28, s28, 5
    s_add_u32 s3, s3, s28
    v_lshrrev_b32 v11, 1, v0
    v_lshlrev_b32 v11, 10, v11
    v_and_b32 v15, 1, v0
    v_lshl_add_u32 v11, v15, 4, v11
    s_add_u32 s28, s3, 0x40000
    buffer_load_dwordx4 v[{WO}:{WO+3}], v11, {SB}, s3 offen
    buffer_load_dwordx4 v[{WO+4}:{WO+7}], v11, {SB}, s28 offen''')
def gload1():
    srdp(S_A,7,512*2752)
    a(f'''v_lshrrev_b32 v6, 2, v0
    v_mul_u32_u24 v6, 2752, v6
    v_and_b32 v15, 3, v0
    v_lshl_add_u32 v6, v15, 4, v6
    s_lshl_b32 s28, s76, 6''')
    for q in range(4):
        a(f's_add_u32 s3, s28, {2752*128*q}\nbuffer_load_dwordx4 v[{W1+4*q}:{W1+4*q+3}], v6, {SA}, s3 offen')
    srdp(S_A,8,2752)
    a(f'''v_and_b32 v6, 31, v0
    v_lshlrev_b32 v6, 1, v6
    buffer_load_ushort v{B1}, v6, {SA}, s28 offen''')
def gload2():
    srdp(S_A,9,1376*1024)
    a(f'''v_and_b32 v6, 255, v0
    v_lshlrev_b32 v6, 2, v6
    s_lshl_b32 s3, s76, 15
    s_lshr_b32 s28, s39, 2
    s_lshl_b32 s28, s28, 14
    s_add_u32 s3, s3, s28''')
    for d in range(16):
        if d%4==0 and d>0: a('s_add_u32 s3, s3, 4096')
        a(f'buffer_load_dword v{W2+d}, v6, {SA}, s3 offen offset:{1024*(d%4)}')
G2=os.environ.get('G2','d')
G1=os.environ.get('G1','t0')
ND=8 if DMA0 else 0
if DMA0: dma(0,8)
if G1=='t0':
    a(f's_cmp_lt_u32 s2, {G0}\ns_cbranch_scc1 C_NOG')
    gload1()
    if G2=='t0': gload2()
    a(f's_waitcnt vmcnt({(23 if G2=="t0" else 7)+ND})')
    a.label('C_NOG')
GSK=G0 if G1=='t0' else 1000
if EDMA:
    a('s_cmp_lt_u32 s2, 192\ns_cbranch_scc1 C_NOED')
    dma(0,8)
    a('s_waitcnt vmcnt(8)')
    a.label('C_NOED')
    GSK=192
a('s_cmp_ge_u32 s2, 192\ns_cbranch_scc1 C_M_DONE\ns_waitcnt vmcnt(%d)'%(8+ND-(4 if WQL else 0)))
for i in range(2): a(f'v_lshlrev_b32 v{24+i}, 16, v{24+i}\nv_mul_f32 v{28+i}, 0xbfb8aa3b, v{24+i}')
for i in range(2): a(f'v_exp_f32 v{28+i}, v{28+i}')
a('s_nop 0')
for i in range(2): a(f'v_add_f32 v{28+i}, 1.0, v{28+i}')
for i in range(2): a(f'v_rcp_f32 v{28+i}, v{28+i}')
a('s_nop 0')
for i in range(2): a(f'v_mul_f32 v{24+i}, v{24+i}, v{28+i}')
bf16r2(24,25,24,25,28)
acc=list(range(48,56))
a(f's_waitcnt vmcnt({6+ND-(4 if WQL else 0)})')
if WQLM=='2': wqload(1)
mul8(acc,32,24,True); mul8(acc,36,25,False)
red8_w(acc,0)
a.label('C_M_DONE')
nstamp('m_pre')
a(BAR)
nstamp('m_done')
if not DMA0:
    a(BAR)
    if WQL:
        a('s_cmp_ge_u32 s2, 192\ns_cbranch_scc1 C_NOWQ2')
        wqload(2 if WQLM=='2' else 3)
        a('s_nop 0')
        a.label('C_NOWQ2')
    if EDMA: a('s_cmp_ge_u32 s2, 192\ns_cbranch_scc1 C_ND1')
    dma(0,4)
    if EDMA: a.label('C_ND1')
a(f's_cmp_ge_u32 s2, {GSK}\ns_cbranch_scc1 CW1\ns_waitcnt vmcnt({12 if DMA0 else (6 if WQL else 8)})')
a.label('CW1')
a('v_lshlrev_b32 v3, 2, v4')
a(BAR)
nstamp('a_gath')
a('ds_read_b32 v40, v3 offset:4096\nds_read_b32 v41, v3 offset:4352\ns_waitcnt lgkmcnt(0)')
mul8(acc,WQ,40,True); mul8(acc,WQ+4,41,False)
red8_w(acc,2048)
a(BAR)
nstamp('a_done')
if not DMA0:
    a(BAR)
    if EDMA: a('s_cmp_ge_u32 s2, 192\ns_cbranch_scc1 C_ND2')
    dma(4,8)
    if EDMA: a.label('C_ND2')
a(f's_cmp_ge_u32 s2, {GSK}\ns_cbranch_scc1 CW2\ns_waitcnt vmcnt({8 if WQL else 10})')
a.label('CW2')
a('v_lshlrev_b32 v1, 6, v5')
a(BAR)
nstamp('b_gath')
for q in range(4): a(f'ds_read_b128 v[{16+4*q}:{19+4*q}], v1 offset:{4608+16*q}')
a('s_waitcnt lgkmcnt(0)')
for k in range(8):
    a(f'v_lshlrev_b32 v42, 16, v{WUK+k}\nv_and_b32 v43, 0xffff0000, v{WUK+k}')
    if k==0: a('v_mul_f32 v48, v16, v42\nv_mul_f32 v49, v17, v43')
    else: a(f'v_fmac_f32 v48, v{16+2*k}, v42\nv_fmac_f32 v49, v{17+2*k}, v43')
a('v_add_f32 v48, v48, v49')
for ctl in ['quad_perm:[1,0,3,2]','quad_perm:[2,3,0,1]','row_half_mirror']:
    a.nop(2); dpp('v_add_f32',48,48,48,ctl)
a(f'''v_cvt_pk_bf16_f32 v49, v48, v48
v_and_b32 v50, 0xffff0000, v49
v_sub_f32 v48, v48, v50
v_cvt_pk_bf16_f32 v48, v48, v48
v_and_b32 v49, 0xffff, v49
v_lshl_or_b32 v48, v48, 16, v49
v_lshlrev_b32 v1, 2, v4
s_lshl_b32 s3, s2, 8
s_add_u32 s3, s3, {QA}
v_cmp_eq_u32 vcc, 0, v5
s_and_saveexec_b64 s[36:37], vcc
buffer_store_dword v48, v1, {WS}, s3 offen {SC1}
s_mov_b64 exec, s[36:37]''')
a(BAR)
nstamp('b_done')
if UVC=='0': stage_uv()
a(f'''v_and_b32 v1, 63, v0
v_lshrrev_b32 v2, 4, v1
v_and_b32 v3, 15, v1
v_min_u32 v6, 7, v3
v_lshlrev_b32 v6, 11, v6
v_lshl_add_u32 v6, v2, 5, v6
s_lshl_b32 s24, s78, 14
s_lshl_b32 s26, s39, 8
s_add_u32 s24, s24, s26
s_add_u32 s24, s24, {QA}
v_and_b32 v7, 7, v3
v_xor_b32 v7, v7, v2
v_lshlrev_b32 v7, 4, v7
v_lshl_add_u32 v7, v3, 7, v7
v_add_u32 v7, s79, v7
v_xor_b32 v8, 64, v7
v_and_b32 v9, 7, v3
v_lshl_add_u32 v11, v2, 3, v9
v_lshlrev_b32 v11, 4, v11
s_lshl_b32 s3, s39, 11
v_add_u32 v12, s3, v11
v_lshrrev_b32 v13, 2, v3
v_lshl_add_u32 v13, v2, 2, v13
v_and_b32 v116, 7, v13
v_bfe_u32 v9, v1, 1, 1
v_xor_b32 v116, v116, v9
v_lshlrev_b32 v116, 4, v116
v_lshl_add_u32 v116, v13, 7, v116
v_and_b32 v9, 1, v1
v_lshl_add_u32 v116, v9, 3, v116
v_add_u32 v116, s79, v116
v_lshlrev_b32 v117, 7, v3
v_lshl_add_u32 v117, v2, 3, v117
v_add_u32 v117, s79, v117
v_lshlrev_b32 v118, 4, v1
v_add_u32 v118, s79, v118
v_lshrrev_b32 v115, 3, v1
v_lshlrev_b32 v115, 16, v115
v_and_b32 v13, 7, v1
v_lshl_add_u32 v115, v13, 4, v115
s_lshl_b32 s72, s78, 19
s_lshl_b32 s26, s77, 10
s_add_u32 s72, s72, s26
s_lshl_b32 s26, s39, 7
s_add_u32 s72, s72, s26
s_add_u32 s72, s72, {PART}
s_lshl_b32 s73, s78, 12
s_lshl_b32 s26, s77, 3
s_add_u32 s73, s73, s26
s_add_u32 s73, s73, {STAT}
v_lshlrev_b32 v114, 9, v3
s_mov_b32 s25, 0x05040100
s_mov_b32 s26, 0x07060302''')
D1=56
gather([f'buffer_load_dwordx4 v[{16+4*q}:{19+4*q}], v6, {WS}, s24 offen offset:{(q>>1)*128+(q&1)*16}' for q in range(4)], range(16,32), 16)
nstamp('c_gath')
a('v_mov_b32 v14, v11')
if UVC=='1': stage_uv(); stage_o()
if UVC in '23': stage_uv()
a('v_mov_b32 v11, v14')
for s_ in range(2):
    for k in range(4):
        x0=16+8*s_+2*k
        a(f'v_perm_b32 v{32+4*s_+k}, v{x0+1}, v{x0}, s25\nv_perm_b32 v{40+4*s_+k}, v{x0+1}, v{x0}, s26')
for T in range(4):
    base=16+8*(T&1)
    a(f'ds_read_b128 v[{base}:{base+3}], v7 offset:{2048*T}\nds_read_b128 v[{base+4}:{base+7}], v8 offset:{2048*T}')
    for s_ in range(2):
        a(f's_waitcnt lgkmcnt({1-s_})')
        a(f'v_mfma_f32_16x16x32_bf16 v[{D1+4*T}:{D1+4*T+3}], v[{base+4*s_}:{base+4*s_+3}], v[{32+4*s_}:{35+4*s_}], '+('0' if s_==0 else f'v[{D1+4*T}:{D1+4*T+3}]'))
        a(f'v_mfma_f32_16x16x32_bf16 v[{D1+4*T}:{D1+4*T+3}], v[{base+4*s_}:{base+4*s_+3}], v[{40+4*s_}:{43+4*s_}], v[{D1+4*T}:{D1+4*T+3}]')
a('v_cmp_gt_u32 vcc, 8, v3\ns_and_saveexec_b64 s[36:37], vcc')
a.nop(7)
for T in range(4): a(f'ds_write_b128 v12, v[{D1+4*T}:{D1+4*T+3}] offset:{XCH+512*T}')
a('s_mov_b64 exec, s[36:37]\ns_waitcnt lgkmcnt(0)')
a(BAR)
nstamp('c_g1')
P0=16
a(f'''s_lshr_b32 s3, s39, 1
s_lshl_b32 s3, s3, 9
s_and_b32 s28, s39, 1
s_lshl_b32 s28, s28, 3
s_add_u32 s3, s3, s28
v_add_u32 v12, s3, v11''')
for w in range(8): a(f'ds_read_b64 v[{16+2*w}:{17+2*w}], v12 offset:{XCH+w*2048}')
a(f'v_add_u32 v12, {SC2}, v12\nv_add_u32 v11, {SC2}, v11\ns_waitcnt lgkmcnt(0)')
for k in range(2):
    a(f'''v_add_f32 v{16+k}, v{16+k}, v{18+k}
    v_add_f32 v{20+k}, v{20+k}, v{22+k}
    v_add_f32 v{24+k}, v{24+k}, v{26+k}
    v_add_f32 v{28+k}, v{28+k}, v{30+k}
    v_add_f32 v{16+k}, v{16+k}, v{20+k}
    v_add_f32 v{24+k}, v{24+k}, v{28+k}
    v_add_f32 v{16+k}, v{16+k}, v{24+k}''')
bf16r2(16,17,16,17,18)
a('v_mul_f32 v16, 0x3db504f3, v16\nv_mul_f32 v17, 0x3db504f3, v17')
bf16r2(16,17,16,17,18)
a('ds_write_b64 v12, v[16:17]\ns_waitcnt lgkmcnt(0)')
a(BAR)
for T in range(4): a(f'ds_read_b128 v[{16+4*T}:{19+4*T}], v11 offset:{512*T}')
a('s_waitcnt lgkmcnt(0)')
nstamp('c_x')
a(f'v_max_f32 v32, v{P0}, v{P0+1}')
for r in range(2,16,2): a(f'v_max3_f32 v32, v32, v{P0+r}, v{P0+r+1}')
for sw in ['v_permlane16_swap_b32','v_permlane32_swap_b32']:
    a(f'v_mov_b32 v33, v32\ns_nop 1\n{sw} v32, v33\ns_nop 1\nv_max_f32 v32, v32, v33')
a(f's_mov_b32 s3, {LOG2E}\nv_mul_f32 v33, s3, v32')
for r in range(16): a(f'v_fma_f32 v{P0+r}, v{P0+r}, s3, -v33')
for r in range(16): a(f'v_exp_f32 v{P0+r}, v{P0+r}')
for kk in range(2):
    for hh in range(2):
        T=2*kk+hh
        a(f'v_cvt_pk_bf16_f32 v{40+4*kk+2*hh}, v{P0+4*T}, v{P0+4*T+1}\nv_cvt_pk_bf16_f32 v{41+4*kk+2*hh}, v{P0+4*T+2}, v{P0+4*T+3}')
nstamp('c_sm')
D2=56
FRG=[72,76,80,84,48,52,16,20]
def rdt(t):
    a(f'v_xor_b32 v13, {t<<5}, v116')
    for kk in range(2):
        f=FRG[t*2+kk]
        a(f'ds_read_b64_tr_b16 v[{f}:{f+1}], v13 offset:{2048*(2*kk)}\nds_read_b64_tr_b16 v[{f+2}:{f+3}], v13 offset:{2048*(2*kk+1)}')
rdt(0); rdt(1); rdt(2)
a(f'v_add_f32 v34, v{P0}, v{P0+1}')
for r in range(2,16): a(f'v_add_f32 v34, v34, v{P0+r}')
rdt(3)
for sw in ['v_permlane16_swap_b32','v_permlane32_swap_b32']:
    a(f'v_mov_b32 v33, v34\ns_nop 1\n{sw} v34, v33\ns_nop 1\nv_add_f32 v34, v34, v33')
for t in range(4):
    for kk in range(2):
        f=FRG[t*2+kk]
        a(f's_waitcnt lgkmcnt({14-2*(t*2+kk)})')
        a(f'v_mfma_f32_16x16x32_bf16 v[{D2+4*t}:{D2+4*t+3}], v[{f}:{f+3}], v[{40+4*kk}:{43+4*kk}], '+('0' if kk==0 else f'v[{D2+4*t}:{D2+4*t+3}]'))
nstamp('c_g2')
a(f'''v_mov_b32 v35, v34
v_mov_b32 v34, v32
v_cmp_gt_u32 vcc, 8, v3
s_and_saveexec_b64 s[36:37], vcc
s_nop 3''')
for t in range(4):
    a(f'v_cvt_pk_bf16_f32 v{16+2*t}, v{D2+4*t}, v{D2+4*t+1}\nv_cvt_pk_bf16_f32 v{17+2*t}, v{D2+4*t+2}, v{D2+4*t+3}')
    a(f'ds_write_b64 v117, v[{16+2*t}:{17+2*t}] offset:{32*t}')
a(f'''s_mov_b64 exec, s[36:37]
s_waitcnt lgkmcnt(0)
ds_read_b128 v[16:19], v118
s_waitcnt lgkmcnt(0)
buffer_store_dwordx4 v[16:19], v115, {WS}, s72 offen {SC1}
v_cmp_gt_u32 vcc, 8, v0
s_and_saveexec_b64 s[36:37], vcc
buffer_store_dwordx2 v[34:35], v114, {WS}, s73 offen {SC1}
s_mov_b64 exec, s[36:37]''')
nstamp('c_st')
a(BAR)
nstamp('c_done')
if UVC in '03': stage_o()
a(f'''v_lshrrev_b32 v4, 3, v0
v_and_b32 v5, 7, v0
v_lshlrev_b32 v6, 10, v4
v_lshl_add_u32 v6, v5, 4, v6
s_lshl_b32 s24, s30, 16
s_lshl_b32 s26, s31, 7
s_add_u32 s24, s24, s26
s_add_u32 s24, s24, {PART}
v_and_b32 v1, 63, v0
v_lshlrev_b32 v7, 3, v1
s_lshl_b32 s25, s30, 9
s_add_u32 s25, s25, {STAT}''')
gather([f'buffer_load_dwordx2 v[40:41], v7, {WS}, s25 offen', f'buffer_load_dwordx4 v[16:19], v6, {WS}, s24 offen'], [40,41,16,17,18,19], 4)
nstamp('d_gath')
if G2=='d':
    a(f's_cmp_lt_u32 s2, {G0}\ns_cbranch_scc1 C_NOG2')
    gload2()
    a.label('C_NOG2')
if UVC=='2': stage_o()
a('v_mov_b32 v42, v40')
wave_allreduce('v_max_f32',[42],[43])
a(f'''v_sub_f32 v40, v40, v42
v_mul_f32 v40, {LOG2E}, v40
v_exp_f32 v40, v40
s_nop 0
v_mul_f32 v41, v41, v40''')
wave_allreduce('v_add_f32',[41],[43])
a('''v_rcp_f32 v41, v41
v_lshlrev_b32 v42, 2, v4
v_mul_f32 v40, v40, v41
s_nop 0
ds_bpermute_b32 v40, v42, v40
s_waitcnt lgkmcnt(0)''')
mul8(acc,16,40,True)
red8_w(acc,0)
a('v_lshlrev_b32 v3, 2, v4')
a(BAR)
sum8_lds(0,256,40,3)
acc16=list(range(16,32))
mulN(acc16,WUV,8,40)
halve16(acc16,['row_ror:8'])
a(f'''s_lshl_b32 s3, s39, 9
v_lshlrev_b32 v1, 6, v5
v_add_u32 v1, s3, v1
v_bfe_u32 v2, v0, 4, 2
v_lshl_add_u32 v1, v2, 4, v1
ds_write_b128 v1, v[16:19] offset:4096
s_waitcnt lgkmcnt(0)''')
a(BAR)
nstamp('d_done')
a(f'''v_lshrrev_b32 v1, 7, v0
v_lshlrev_b32 v1, 12, v1
v_and_b32 v2, 127, v0
v_lshl_add_u32 v1, v2, 2, v1
s_lshr_b32 s3, s2, 5
s_lshl_b32 s3, s3, 14
s_add_u32 s3, s3, {CP}''')
if CPT:
    a('v_lshlrev_b32 v1, 5, v0')
    gather([f'buffer_load_dwordx4 v[16:19], v1, {WS}, s3 offen', f'buffer_load_dwordx4 v[20:23], v1, {WS}, s3 offen offset:16'], range(16,24))
else:
    gather([f'buffer_load_dword v{16+j}, v1, {WS}, s3 offen offset:{512*j}' for j in range(8)], range(16,24), 8)
nstamp('e_gath')
if G2=='e':
    a(f's_cmp_lt_u32 s2, {G0}\ns_cbranch_scc1 C_NOG2')
    gload2()
    a.label('C_NOG2')
sum8r(16)
bf16r(16,16)
a(f'''v_lshlrev_b32 v1, 2, v0
ds_write_b32 v1, v16 offset:8192
v_lshrrev_b32 v3, 1, v0
v_lshlrev_b32 v3, 2, v3
s_waitcnt lgkmcnt(0)''')
a(BAR)
a('ds_read_b32 v40, v3 offset:8192\nds_read_b32 v41, v3 offset:9216\ns_waitcnt lgkmcnt(0)')
mul8(acc,WO,40,True); mul8(acc,WO+4,41,False)
c0,c1=halve8(acc)
for ctl in ['row_ror:8','row_ror:4','row_ror:2']:
    a.nop(2); dpp('v_add_f32',c0,c0,c0,ctl); dpp('v_add_f32',c1,c1,c1,ctl)
a(f'''s_lshl_b32 s3, s39, 6
v_and_b32 v5, 1, v0
v_lshlrev_b32 v3, 5, v5
v_add_u32 v3, s3, v3
v_bfe_u32 v5, v0, 4, 1
v_lshl_add_u32 v3, v5, 3, v3
v_bfe_u32 v5, v0, 5, 1
v_lshl_add_u32 v3, v5, 4, v3
ds_write_b64 v3, v[{c0}:{c1}] offset:12288
s_waitcnt lgkmcnt(0)''')
a(BAR)
nstamp('e_done')
a(f'''s_cmp_lt_u32 s2, {H0}
s_cbranch_scc1 K_TS
v_lshlrev_b32 v1, 4, v0
v_add_u32 v1, {MGL}, v1
ds_read_b128 v[{MG}:{MG+3}], v1
s_cmp_lt_u32 s2, {G0}
s_cbranch_scc1 H_GO''')
if G1=='e': gload1()
a(f'''v_lshlrev_b32 v1, 2, v0
s_mov_b32 s3, {OP}
s_add_u32 s24, s3, 4096
s_add_u32 s25, s3, 8192
s_add_u32 s26, s3, 12288''')
if OPT:
    a('v_lshlrev_b32 v2, 5, v0')
    gather([f'buffer_load_dwordx4 v[16:19], v2, {WS}, s3 offen', f'buffer_load_dwordx4 v[20:23], v2, {WS}, s3 offen offset:16'], range(16,24))
else:
    gather([f'buffer_load_dword v{16+k}, v1, {WS}, s{3 if k<2 else 23+k//2} offen offset:{2048*(k%2)}' for k in range(8)], range(16,24), 8)
nstamp('g_gath')
if G2=='g': gload2()
sum8r(16)
bf16r(16,16)
a(f's_waitcnt lgkmcnt(0)\nv_mul_f32 v16, v16, v{MG}')
bf16r(16,16)
a(f'v_lshlrev_b32 v17, 16, v{XE}\nv_add_f32 v16, v16, v17')
bf16r(16,16)
a(f's_lshl_b32 s3, s39, 3\nv_mov_b32 v3, s3\nv_mov_b32 v2, 0')
def ln_stat_wg(x,slot,extra=None,extra2=None):
    a(f'v_mov_b32 v44, v{x}\nv_mul_f32 v45, v{x}, v{x}')
    wave_allreduce('v_add_f32',[44,45],[46,47])
    a(f'ds_write_b64 v3, v[44:45] offset:{slot}')
    if extra: a(extra)
    a(f'''s_waitcnt lgkmcnt(0)
    s_barrier
    ds_read_b128 v[20:23], v2 offset:{slot}
    ds_read_b128 v[24:27], v2 offset:{slot+16}
    ds_read_b128 v[28:31], v2 offset:{slot+32}
    ds_read_b128 v[32:35], v2 offset:{slot+48}''')
    if extra2: a(extra2)
    a(f'''s_waitcnt lgkmcnt(0)
    v_add_f32 v20, v20, v22
    v_add_f32 v21, v21, v23
    v_add_f32 v24, v24, v26
    v_add_f32 v25, v25, v27
    v_add_f32 v28, v28, v30
    v_add_f32 v29, v29, v31
    v_add_f32 v32, v32, v34
    v_add_f32 v33, v33, v35
    v_add_f32 v20, v20, v24
    v_add_f32 v21, v21, v25
    v_add_f32 v28, v28, v32
    v_add_f32 v29, v29, v33
    v_add_f32 v44, v20, v28
    v_add_f32 v45, v21, v29
    v_mul_f32 v44, 0x3b000000, v44
    v_mul_f32 v45, 0x3b000000, v45
    v_fma_f32 v45, -v44, v44, v45
    v_max_f32 v45, 0, v45''')
    ln_fin(44,45,46)
ln_stat_wg(16,8192)
a('v_sub_f32 v16, v16, v44')
bf16r(16,16)
div1(20,16,45,22,23)
bf16r(16,20)
a(f'v_mul_f32 v16, v16, v{MG+2}')
bf16r(16,16)
a(f'v_add_f32 v16, v16, v{MG+1}')
bf16r(16,16)
a('v_lshrrev_b32 v5, 2, v0\nv_lshlrev_b32 v5, 2, v5')
ln_stat_wg(16,8320,'ds_write_b32 v1, v16','\n'.join(f'ds_read_b32 v{36+q}, v5 offset:{512*q}' for q in range(4)))
nstamp('g_ln')
for q in range(4): a(f'v_sub_f32 v{36+q}, v{36+q}, v44')
bf16r2(36,37,36,37,20); bf16r2(38,39,38,39,20)
a('v_rcp_f32 v20, v45\ns_nop 0')
for q in range(4): a(f'v_mul_f32 v{24+q}, v{36+q}, v20')
for q in range(4): a(f'v_fma_f32 v{28+q}, -v{24+q}, v45, v{36+q}')
for q in range(4): a(f'v_fma_f32 v{28+q}, v{28+q}, v20, v{24+q}')
bf16r2(20,21,28,29,24); bf16r2(22,23,30,31,24)
if G2=='g': a('s_waitcnt vmcnt(16)')
for q in range(4): mul8(acc,W1+4*q,20+q,q==0)
c0,c1=halve8(acc)
for ctl in ['row_ror:8','row_ror:4']:
    a.nop(2); dpp('v_add_f32',c0,c0,c0,ctl); dpp('v_add_f32',c1,c1,c1,ctl)
a(f'''s_lshl_b32 s3, s39, 7
v_and_b32 v5, 3, v0
v_lshlrev_b32 v3, 5, v5
v_add_u32 v3, s3, v3
v_bfe_u32 v5, v0, 4, 1
v_lshl_add_u32 v3, v5, 3, v3
v_bfe_u32 v5, v0, 5, 1
v_lshl_add_u32 v3, v5, 4, v3
ds_write_b64 v3, v[{c0}:{c1}] offset:9216
s_lshr_b32 s28, s39, 2
s_lshl_b32 s28, s28, 4
v_add_u32 v3, s28, v0
v_and_b32 v3, 31, v3
v_lshlrev_b32 v3, 2, v3
ds_bpermute_b32 v45, v3, v{B1}
s_waitcnt lgkmcnt(0)
s_barrier''')
sum8_lds(9216,128,8,3)
bf16r(8,8)
a('v_lshlrev_b32 v45, 16, v45\nv_add_f32 v8, v8, v45')
bf16r(8,8)
a('''v_mul_f32 v9, v8, v8
v_mov_b32 v10, 0x3d372713
v_fma_f32 v9, v9, v10, 1.0
v_mul_f32 v9, v9, v8
v_mul_f32 v9, 0xc0135761, v9
v_exp_f32 v9, v9
s_nop 0
v_add_f32 v9, 1.0, v9
v_rcp_f32 v9, v9
s_nop 0
v_mul_f32 v8, v8, v9''')
bf16r(8,8)
a('s_nop 0')
for k in range(16): a(f'v_readlane_b32 s{80+k}, v8, {k}')
a('s_waitcnt vmcnt(0)')
for d in range(16):
    a(f'v_lshlrev_b32 v44, 16, v{W2+d}\nv_and_b32 v45, 0xffff0000, v{W2+d}')
    op='v_mul_f32' if d==0 else 'v_fmac_f32'
    a(f'{op} v42, s{80+d}, v44\n{op} v43, s{80+d}, v45')
a(f'''v_and_b32 v1, 255, v0
v_lshlrev_b32 v1, 3, v1
s_cmp_lt_u32 s39, 4
s_cbranch_scc1 G_LO
ds_write_b64 v1, v[42:43] offset:10240
s_waitcnt lgkmcnt(0)
s_barrier
s_branch K_TS''')
a.label('G_LO')
a(f'''s_barrier
ds_read_b64 v[44:45], v1 offset:10240
s_lshl_b32 s3, s76, 11
s_add_u32 s3, s3, {O2P}
s_waitcnt lgkmcnt(0)
v_add_f32 v42, v42, v44
v_add_f32 v43, v43, v45
buffer_store_dwordx2 v[42:43], v1, {WS}, s3 offen {SC1}''')
nstamp('g_done')
a('s_branch K_TS')
a.label('H_GO')
a(f'''s_sub_u32 s28, s2, {H0}
v_lshrrev_b32 v4, 4, v0
v_and_b32 v5, 15, v0
v_lshlrev_b32 v1, 11, v4
v_lshl_add_u32 v1, v5, 4, v1
s_lshl_b32 s3, s28, 8
s_add_u32 s24, s3, {OP}
s_add_u32 s25, s3, {O2P}
s_add_u32 s26, s25, 65536''')
for r in list(range(16,20))+list(range(24,28)): a(f'v_mov_b32 v{r}, 0')
if OPT:
    a(f'''s_cmp_lg_u32 s39, 0
    s_cbranch_scc1 H_SK0
    v_lshlrev_b32 v2, 5, v0
    s_lshl_b32 s3, s28, 11
    s_add_u32 s3, s3, {OP}''')
    gather([f'buffer_load_dwordx4 v[48:51], v2, {WS}, s3 offen', f'buffer_load_dwordx4 v[52:55], v2, {WS}, s3 offen offset:16'], range(48,56))
    sum8r(48)
else:
    a('s_cmp_ge_u32 s39, 2\ns_cbranch_scc1 H_SK0')
    gather([f'buffer_load_dwordx4 v[16:19], v1, {WS}, s24 offen'], range(16,20))
a.label('H_SK0')
def red4(regs,off):
    for sw in ['v_permlane16_swap_b32','v_permlane32_swap_b32']:
        for i,r in enumerate(regs): a(f'v_mov_b32 v{44+i}, v{r}')
        a.nop(1)
        for i,r in enumerate(regs): a(f'{sw} v{r}, v{44+i}')
        a.nop(1)
        for i,r in enumerate(regs): a(f'v_add_f32 v{r}, v{r}, v{44+i}')
    a(f's_lshl_b32 s3, s39, 8\nv_lshl_add_u32 v2, v5, 4, s3\nds_write_b128 v2, v[{regs[0]}:{regs[3]}] offset:{off}')
if not OPT: red4([16,17,18,19],0)
a(f'''v_lshlrev_b32 v6, 4, v0
s_waitcnt lgkmcnt(0)
v_mov_b32 v16, v{MG}
v_mov_b32 v17, v{MG+3}
v_lshlrev_b32 v18, 16, v{XE}
v_lshlrev_b32 v19, 16, v{B2}
ds_write_b128 v6, v[16:19] offset:4096
v_cmp_gt_u32 vcc, {NG5-32}, v4
s_and_saveexec_b64 s[34:35], vcc
s_cbranch_execz H_SK''')
gather([f'buffer_load_dwordx4 v[24:27], v1, {WS}, s26 offen'], range(24,28))
a.label('H_SK')
a('s_mov_b64 exec, s[34:35]')
gather([f'buffer_load_dwordx4 v[20:23], v1, {WS}, s25 offen'], range(20,24), 8)
nstamp('h_gath')
for c_ in range(4): a(f'v_add_f32 v{20+c_}, v{20+c_}, v{24+c_}')
red4([20,21,22,23],2048)
a(f'''s_waitcnt lgkmcnt(0)
s_barrier
s_cmp_lg_u32 s39, 0
s_cbranch_scc1 K_TS
s_lshl_b32 s3, s28, 10
v_add_u32 v2, s3, v6
ds_read_b128 v[24:27], v2 offset:4096
v_lshlrev_b32 v1, 2, v0''')
if OPT: a('v_mov_b32 v16, v48')
else: sum8_lds(0,256,16,1)
sum8_lds(2048,256,17,1)
bf16r2(16,17,16,17,20)
a('v_mul_f32 v16, v16, v24\nv_add_f32 v17, v17, v27')
bf16r2(16,17,16,17,20)
a('v_add_f32 v16, v16, v26\nv_mul_f32 v17, v17, v25')
bf16r2(16,17,16,17,20)
srdp(S_A,13,1024)
a(f'''v_add_f32 v16, v16, v17
v_cvt_pk_bf16_f32 v16, v16, v16
v_lshlrev_b32 v1, 1, v0
s_lshl_b32 s3, s28, 7
buffer_store_short v16, v1, {SA}, s3 offen''')
if DBGT:
    srdp(S_DBG,14,256)
    a(f'''s_memrealtime s[100:101]
    s_waitcnt lgkmcnt(0)
    s_sub_u32 s100, s100, s72
    v_mov_b32 v2, s100
    s_lshl_b32 s3, s28, 2
    v_mov_b32 v3, 0
    v_cmp_eq_u32 vcc, 0, v0
    s_and_saveexec_b64 s[36:37], vcc
    buffer_store_dword v2, v3, {SD}, s3 offen offset:16''')
a.label('K_TS')
tsend(); a('s_endpgm')
a.label('AUX')
a(f'''v_subrev_u32 v0, 512, v0
v_and_b32 v11, 63, v0
v_lshlrev_b32 v11, 4, v11
s_lshl_b32 s3, s32, 8
v_lshl_add_u32 v6, v0, 1, s3
s_waitcnt lgkmcnt(0)''')
srdp(S_WS,15,WSBYTES); srdp(S_DBG,14,256); srdp(S_X,0,1024)
a(f'''buffer_load_dwordx4 v[56:59], v11, {SX}, 0 offen
buffer_load_ushort v46, v6, {SX}, 0 offen
s_cmp_lt_u32 s2, 192
s_cbranch_scc1 X_NOINIT
s_cmp_ge_u32 s2, 208
s_cbranch_scc1 X_NOINIT
s_barrier
s_cmp_ge_u32 s2, 198
s_cbranch_scc1 X_NOINIT
s_barrier''')
a.label('X_NOINIT')
a('s_waitcnt vmcnt(0)')
if TLB!='0':
    a(f's_cmp_lg_u32 s39, 9\ns_cbranch_scc1 X_NOTLB\ns_cmp_ge_u32 s2, {TLB}\ns_cbranch_scc1 X_NOTLB\nv_lshlrev_b32 v12, 12, v11')
    for i,(idx,nb) in enumerate([(1,4194304),(4,4194304),(5,4194304),(3,4194304),(7,512*2752),(9,1376*1024)]):
        srdp(S_A,idx,nb)
        a(f'buffer_load_dword v{72+i}, v12, {SA}, 0 offen')
    a.label('X_NOTLB')
x8=list(range(60,68)); unpack8(x8,56)
ln_stats(x8,44,45,47)
a('v_lshlrev_b32 v46, 16, v46\nv_sub_f32 v46, v46, v44')
bf16r(46,46)
div1(18,46,45,20,21)
bf16r(46,18)
a(f'''v_lshlrev_b32 v1, 2, v0
s_cmp_lg_u32 s39, 8
s_cbranch_scc1 X_B1''')
l0=L('WA'); l1=L('WD')
a('s_mov_b32 s38, 0\nv_min_u32 v71, 5, v0\nv_lshlrev_b32 v71, 2, v71')
a.label(l0)
a(f'''buffer_load_dword v70, v71, {SD}, 0 offen offset:128 {SC1}
s_add_u32 s38, s38, 1
s_waitcnt vmcnt(0)
v_cmp_eq_u32 vcc, 0, v70
s_cmp_gt_u32 s38, 0x40000
s_cbranch_scc1 {l1}
s_nop 2
s_cmp_eq_u64 vcc, 0
s_cbranch_scc1 {l1}
s_sleep {DSL}
s_branch {l0}''')
a.label(l1)
a.label('X_B1')
a(BAR)
a(f'''s_cmp_ge_u32 s2, 192
s_cbranch_scc1 X_A
s_cmp_lg_u32 s39, 8
s_cbranch_scc1 X_A''')
sum8_lds(0,256,8,1)
a(f'''s_mul_i32 s3, s32, 12288
s_lshl_b32 s28, s33, 8
s_add_u32 s3, s3, s28
buffer_store_dword v8, v1, {WS}, s3 offen offset:{MODP} {SC1}''')
a.label('X_A')
if not DMA0: a(BAR)
a('v_lshlrev_b32 v6, 1, v6\ns_mov_b32 s25, 12288\ns_mov_b32 s26, 24576\ns_mov_b32 s27, 36864')
gather([f'buffer_load_dword v{16+2*p+k}, v6, {WS}, {"0" if p==0 else "s%d"%(24+p)} offen offset:{MODP+k*2048}' for p in range(4) for k in range(2)], range(16,24), 8)
a('''v_add_f32 v16, v16, v18
v_add_f32 v20, v20, v22
v_add_f32 v17, v17, v19
v_add_f32 v21, v21, v23
v_add_f32 v16, v16, v20
v_add_f32 v17, v17, v21''')
bf16r2(16,17,16,17,47)
a('v_add_f32 v17, 1.0, v17')
bf16r(17,17)
a('v_mul_f32 v18, v46, v17')
bf16r(18,18)
a('v_add_f32 v18, v18, v16')
bf16r(18,18)
a('ds_write_b32 v1, v18 offset:4096\ns_waitcnt lgkmcnt(0)')
a(BAR)
a('s_cmp_lg_u32 s39, 8\ns_cbranch_scc1 X_PI')
poll_dbg(0,16)
a('s_branch X_B3')
a.label('X_PI')
a(f'''v_mov_b32 v16, -1
v_mov_b32 v17, -1
v_mov_b32 v18, -1
v_mov_b32 v19, -1
v_and_b32 v11, 63, v0
v_lshlrev_b32 v11, 4, v11
s_lshr_b32 s3, s2, 6
s_lshl_b32 s3, s3, 19
s_and_b32 s28, s2, 63
s_lshl_b32 s28, s28, 10
s_add_u32 s3, s3, s28
s_add_u32 s3, s3, {PART}''')
for q in range(8):
    a(f'buffer_store_dwordx4 v[16:19], v11, {WS}, s3 offen {SC1}')
    if q<7: a('s_add_u32 s3, s3, 65536')
a.label('X_B3')
a(BAR)
a('s_cmp_lg_u32 s39, 8\ns_cbranch_scc1 X_Q')
sum8_lds(2048,256,8,1)
a(f'''s_lshl_b32 s3, s2, 8
s_add_u32 s3, s3, {QP}
buffer_store_dword v8, v1, {WS}, s3 offen {SC1}''')
a.label('X_Q')
if not DMA0: a(BAR)
a(f'''v_and_b32 v7, 63, v0
v_lshlrev_b32 v7, 2, v7
s_lshl_b32 s3, s30, 11
s_sub_u32 s28, s39, 8
s_lshl_b32 s28, s28, 10
s_add_u32 s3, s3, s28
s_add_u32 s3, s3, {QP}''')
gather([f'buffer_load_dword v{16+m}, v7, {WS}, s3 offen offset:{256*m}' for m in range(4)], range(16,20), 8)
a('''v_add_f32 v16, v16, v17
v_add_f32 v18, v18, v19
v_add_f32 v16, v16, v18''')
bf16r(16,16)
a('ds_write_b32 v1, v16 offset:4608\ns_waitcnt lgkmcnt(0)')
a(BAR)
a(BAR)
a(BAR)
a(BAR)
a(f'''s_cmp_lt_u32 s2, {H0}
s_cbranch_scc1 X_MGD
s_mov_b32 s24, 4096
s_mov_b32 s25, {4096+12288}
s_mov_b32 s26, {4096+24576}
s_mov_b32 s27, {4096+36864}
v_add_u32 v6, 4096, v1''')
gather([f'buffer_load_dword v{72+16*rr+4*p+k}, v{1 if k<2 else 6}, {WS}, s{24+p} offen offset:{MODP+(k%2)*2048+512*rr}' for rr in range(4) for p in range(4) for k in range(4)], range(72,136))
for rr in range(4):
    b=72+16*rr
    for k in range(4): a(f'v_add_f32 v{b+k}, v{b+k}, v{b+4+k}\nv_add_f32 v{b+8+k}, v{b+8+k}, v{b+12+k}\nv_add_f32 v{b+k}, v{b+k}, v{b+8+k}')
    bf16r2(b,b+1,b,b+1,20); bf16r2(b+2,b+3,b+2,b+3,20)
    a(f'v_add_f32 v{b+2}, 1.0, v{b+2}')
    bf16r(b+2,b+2)
    a(f'v_lshlrev_b32 v7, 2, v1\nv_add_u32 v7, {MGL+2048*rr}, v7\nds_write_b128 v7, v[{b}:{b+3}]')
a('s_waitcnt lgkmcnt(0)')
a.label('X_MGD')
a(BAR)
a(BAR)
a(BAR)
sum8_lds(4096,512,8,1)
if CPT:
    a(f'''s_lshl_b32 s3, s30, 12
    s_lshl_b32 s28, s31, 2
    s_add_u32 s3, s3, s28
    s_add_u32 s3, s3, {CP}
    v_lshlrev_b32 v2, 5, v0
    buffer_store_dword v8, v2, {WS}, s3 offen {SC1}''')
else:
    a(f'''s_lshl_b32 s3, s2, 9
    s_add_u32 s3, s3, {CP}
    buffer_store_dword v8, v1, {WS}, s3 offen {SC1}''')
a(BAR)
a(BAR)
a(f'''s_cmp_lg_u32 s39, 8
s_cbranch_scc1 X_END
v_cmp_gt_u32 vcc, 16, v0
s_and_saveexec_b64 s[36:37], vcc''')
sum8_lds(12288,64,8,1)
if OPT:
    a(f'''s_lshr_b32 s3, s2, 5
    s_lshl_b32 s3, s3, 2
    s_and_b32 s28, s2, 7
    s_lshl_b32 s28, s28, 11
    s_add_u32 s3, s3, s28
    s_bfe_u32 s28, s2, 0x20003
    s_lshl_b32 s28, s28, 9
    s_add_u32 s3, s3, s28
    s_add_u32 s3, s3, {OP}
    v_lshlrev_b32 v2, 5, v0
    buffer_store_dword v8, v2, {WS}, s3 offen {SC1}''')
else:
    a(f'''s_lshr_b32 s3, s2, 5
    s_lshl_b32 s3, s3, 11
    s_and_b32 s28, s2, 7
    s_lshl_b32 s28, s28, 8
    s_add_u32 s3, s3, s28
    s_bfe_u32 s28, s2, 0x20003
    s_lshl_b32 s28, s28, 6
    s_add_u32 s3, s3, s28
    s_add_u32 s3, s3, {OP}
    buffer_store_dword v8, v1, {WS}, s3 offen {SC1}''')
a.label('X_END')
a.label('K_END'); a('s_endpgm')

KD=f'''.amdhsa_kernel {KN}
  .amdhsa_next_free_vgpr 160
  .amdhsa_next_free_sgpr 102
  .amdhsa_accum_offset 160
  .amdhsa_group_segment_fixed_size 0
  .amdhsa_kernarg_size 128
  .amdhsa_user_sgpr_count 2
  .amdhsa_user_sgpr_kernarg_segment_ptr 1
  .amdhsa_system_sgpr_workgroup_id_x 1
.end_amdhsa_kernel'''
out=[l for l in HDR if l.startswith(';') and '@launch' not in l and 'Override' not in l and 'grid=ceil' not in l]
out.append(f'; @launch grid=(256,1,1) block=(640,1,1) lds={LDS}')
out.append('.amdgcn_target "amdgcn-amd-amdhsa--gfx950"\n.text')
out+=a.L
out.append('.section .rodata,"a"\n.p2align 6\n'+KD)
dst=sys.argv[1] if len(sys.argv)>1 else 'cdna_kernels/%s.s'%NAME
open(dst,'w').write('\n'.join(out)+'\n')
print('wrote',dst,len(a.L),'lines')
```

```python
import sys, os
NAME='adaLN_cond__compressed_kv_cla__mixer_channel_mlp__decode'
HDR=open('cdna_kernels/%s.s.ref'%NAME).read().split('\n')
KN=NAME+'_kernel'
TS=os.environ.get('TS','0')=='1'
NST=os.environ.get('NST','').split(',')
SLP=os.environ.get('SLP','1')
DSL=os.environ.get('DSL','2')
SC1='sc1'
DMA0=os.environ.get('DMA0','0')=='1'
WQLM=os.environ.get('WQL','2')
EDMA=os.environ.get('EDMA','0')=='1'
WQL=WQLM!='0'
AXL=os.environ.get('AXL','0')=='1'
TLB=os.environ.get('TLB','0')
OPT=os.environ.get('OPT','0')=='1'
CPT=os.environ.get('CPT','0')=='1'
UVC=os.environ.get('UVC','0')
MODP=0x0
QP=0x10000
QA=0x20000
STAT=0x30000
CP=0x40000
OP=0x60000
O2P=0x70000
PART=0x100000
TSOFF=0x500000
WSBYTES=0x600000
XCH=0; RB=16384; REG=64*128; MGL=RB+8*REG; SC2=MGL+8192; LUV=SC2+2048; LWO=LUV+16384; LDS=(LWO+16384) if os.environ.get('AXL','0')=='1' else LUV
NG5=43; G0=213; H0=205
WQ=72; WUK=80; WUV=88; WO=96; TSV=104; VDMA=119; XE=120; B1=121; B2=122; VRED=123; MG=124; W1=128; W2=144
S_WS=4; S_DBG=8; S_X=12; S_A=16; S_B=20; S_C=96; P=40
LOG2E='0x3fb8aa3b'
WS=f's[{S_WS}:{S_WS+3}]'
SA=f's[{S_A}:{S_A+3}]'; SB=f's[{S_B}:{S_B+3}]'; SC=f's[{S_C}:{S_C+3}]'; SX=f's[{S_X}:{S_X+3}]'; SD=f's[{S_DBG}:{S_DBG+3}]'

class A:
    def __init__(s): s.L=[]
    def __call__(s,x):
        for l in x.strip('\n').split('\n'): s.L.append('    '+l.strip())
    def label(s,x): s.L.append(x+':')
    def nop(s,n):
        while n>0:
            k=min(n,16); s('s_nop %d'%(k-1)); n-=k
a=A()
def srd(d,lo,hi,nbytes):
    a(f's_mov_b32 s{d}, s{lo}\ns_mov_b32 s{d+1}, s{hi}\ns_mov_b32 s{d+2}, {nbytes}\ns_mov_b32 s{d+3}, 0x20000')
def srdp(d,i,n): srd(d,P+2*i,P+2*i+1,n)
def dpp(op,d,s0,s1,ctl): a(f'{op}_dpp v{d}, v{s0}, v{s1} {ctl} row_mask:0xf bank_mask:0xf')
def wave_allreduce(op, regs, tmps):
    for ctl in ['row_ror:8','row_ror:4','row_ror:2','row_ror:1']:
        a.nop(2 if len(regs)<3 else 1)
        for r in regs: dpp(op,r,r,r,ctl)
    for sw in ['v_permlane16_swap_b32','v_permlane32_swap_b32']:
        for r,t in zip(regs,tmps): a(f'v_mov_b32 v{t}, v{r}')
        a.nop(2)
        for r,t in zip(regs,tmps): a(f'{sw} v{r}, v{t}')
        a.nop(1)
        for r,t in zip(regs,tmps): a(f'{op} v{r}, v{r}, v{t}')
def bf16r(d,s_): a(f'v_cvt_pk_bf16_f32 v{d}, v{s_}, v{s_}\nv_lshlrev_b32 v{d}, 16, v{d}')
def bf16r2(d0,d1,s0,s1,t): a(f'v_cvt_pk_bf16_f32 v{t}, v{s0}, v{s1}\nv_lshlrev_b32 v{d0}, 16, v{t}\nv_and_b32 v{d1}, 0xffff0000, v{t}')
def halve8(acc):
    a.nop(2)
    for i in range(4): a(f'v_permlane32_swap_b32 v{acc[i]}, v{acc[i+4]}')
    a.nop(1)
    for i in range(4): a(f'v_add_f32 v{acc[i]}, v{acc[i]}, v{acc[i+4]}')
    a.nop(1)
    for i in range(2): a(f'v_permlane16_swap_b32 v{acc[i]}, v{acc[i+2]}')
    a.nop(1)
    for i in range(2): a(f'v_add_f32 v{acc[i]}, v{acc[i]}, v{acc[i+2]}')
    return acc[0],acc[1]
def halve16(acc, rors):
    a.nop(2)
    for i in range(8): a(f'v_permlane32_swap_b32 v{acc[i]}, v{acc[i+8]}')
    a.nop(1)
    for i in range(8): a(f'v_add_f32 v{acc[i]}, v{acc[i]}, v{acc[i+8]}')
    a.nop(1)
    for i in range(4): a(f'v_permlane16_swap_b32 v{acc[i]}, v{acc[i+4]}')
    a.nop(1)
    for i in range(4): a(f'v_add_f32 v{acc[i]}, v{acc[i]}, v{acc[i+4]}')
    for ctl in rors:
        for i in range(4): dpp('v_add_f32',acc[i],acc[i],acc[i],ctl)
    return acc[:4]
def mul8(acc,w,sc,first,t0=42,t1=43):
    for k in range(4):
        a(f'v_lshlrev_b32 v{t0}, 16, v{w+k}\nv_and_b32 v{t1}, 0xffff0000, v{w+k}')
        op='v_mul_f32' if first else 'v_fmac_f32'
        a(f'{op} v{acc[2*k]}, v{sc}, v{t0}\n{op} v{acc[2*k+1]}, v{sc}, v{t1}')
def mulN(acc,w,n,sc,t0=42,t1=43):
    for k in range(n):
        a(f'v_lshlrev_b32 v{t0}, 16, v{w+k}\nv_and_b32 v{t1}, 0xffff0000, v{w+k}\nv_mul_f32 v{acc[2*k]}, v{sc}, v{t0}\nv_mul_f32 v{acc[2*k+1]}, v{sc}, v{t1}')
def ln_fin(vm,vs,t0):
    bf16r2(vm,vs,vm,vs,t0)
    a(f'v_add_f32 v{vs}, 0x3727c5ac, v{vs}')
    bf16r(vs,vs)
    a(f'v_sqrt_f32 v{vs}, v{vs}\ns_nop 0')
    bf16r(vs,vs)
def ln_stats(x8, vm, vs, t0):
    a(f'v_add_f32 v{vm}, v{x8[0]}, v{x8[1]}')
    for k in range(2,8): a(f'v_add_f32 v{vm}, v{vm}, v{x8[k]}')
    wave_allreduce('v_add_f32',[vm],[t0])
    a(f'v_mul_f32 v{vm}, 0x3b000000, v{vm}\nv_mov_b32 v{vs}, 0')
    for k in range(8): a(f'v_sub_f32 v{t0}, v{x8[k]}, v{vm}\nv_fmac_f32 v{vs}, v{t0}, v{t0}')
    wave_allreduce('v_add_f32',[vs],[t0])
    a(f'v_mul_f32 v{vs}, 0x3b000000, v{vs}')
    ln_fin(vm,vs,t0)
def div1(d,n,den,t0,t1):
    a(f'''v_rcp_f32 v{t0}, v{den}
    s_nop 0
    v_mul_f32 v{t1}, v{n}, v{t0}
    v_fma_f32 v{d}, -v{t1}, v{den}, v{n}
    v_fma_f32 v{d}, v{d}, v{t0}, v{t1}''')
def unpack8(dst, src):
    for k in range(4): a(f'v_and_b32 v{dst[2*k+1]}, 0xffff0000, v{src+k}\nv_lshlrev_b32 v{dst[2*k]}, 16, v{src+k}')
def sum8r(b):
    a(f'''v_add_f32 v{b}, v{b}, v{b+1}
    v_add_f32 v{b+2}, v{b+2}, v{b+3}
    v_add_f32 v{b+4}, v{b+4}, v{b+5}
    v_add_f32 v{b+6}, v{b+6}, v{b+7}
    v_add_f32 v{b}, v{b}, v{b+2}
    v_add_f32 v{b+4}, v{b+4}, v{b+6}
    v_add_f32 v{b}, v{b}, v{b+4}''')
def sum8_lds(off,stride,dst,addr):
    for w in range(8): a(f'ds_read_b32 v{8+w}, v{addr} offset:{off+w*stride}')
    a('s_waitcnt lgkmcnt(0)')
    sum8r(8)
    if dst!=8: a(f'v_mov_b32 v{dst}, v8')
lid=[0]
def L(p):
    lid[0]+=1; return f'{p}{lid[0]}'
def nstamp(nm):
    if TS and nm in NST:
        i=1+NST.index(nm)
        a(f's_memrealtime s[100:101]\ns_waitcnt lgkmcnt(0)\nv_mov_b32 v{TSV+2*i}, s100\nv_mov_b32 v{TSV+1+2*i}, s101')
def tsend():
    if not TS: return
    a(f'''s_waitcnt vmcnt(0)
    s_memrealtime s[100:101]
    s_mov_b64 exec, -1
    v_cmp_eq_u32 vcc, 0, v0
    s_and_saveexec_b64 s[36:37], vcc
    s_waitcnt lgkmcnt(0)
    v_mov_b32 v5, 0
    s_lshl_b32 s3, s2, 6
    s_add_u32 s3, s3, {TSOFF}
    v_mov_b32 v0, s100
    v_mov_b32 v1, s101
    v_mov_b32 v2, 0
    v_mov_b32 v3, 0
    buffer_store_dwordx4 v[{TSV}:{TSV+3}], v5, s[4:7], s3 offen
    buffer_store_dwordx4 v[{TSV+4}:{TSV+7}], v5, s[4:7], s3 offen offset:16
    buffer_store_dwordx4 v[{TSV+8}:{TSV+11}], v5, s[4:7], s3 offen offset:32
    buffer_store_dwordx4 v[0:3], v5, s[4:7], s3 offen offset:48''')
import re
PIPE=os.environ.get('PIPE','0')=='1'
def chk(r):
    r=list(r)
    if len(r)==1: a(f'v_mov_b32 v70, v{r[0]}'); i=1
    elif len(r)==2: a(f'v_max_u32 v70, v{r[0]}, v{r[1]}'); i=2
    else: a(f'v_max3_u32 v70, v{r[0]}, v{r[1]}, v{r[2]}'); i=3
    while i<len(r):
        if i+1<len(r): a(f'v_max3_u32 v70, v70, v{r[i]}, v{r[i+1]}'); i+=2
        else: a(f'v_max_u32 v70, v70, v{r[i]}'); i+=1
    a('v_cmp_eq_u32 vcc, -1, v70')
def shift_load(x,delta):
    m=re.match(r'(\S+) v\[(\d+):(\d+)\](.*)',x)
    if m: return f'{m.group(1)} v[{int(m.group(2))+delta}:{int(m.group(3))+delta}]{m.group(4)}'
    m=re.match(r'(\S+) v(\d+)(,.*)',x)
    return f'{m.group(1)} v{int(m.group(2))+delta}{m.group(3)}'
def gather(loads, regs, delta=None):
    l0=L('GA'); l1=L('GD'); l2=L('GB')
    regs=list(regs)
    if delta is None or not PIPE:
        a('s_mov_b32 s38, 0')
        a.label(l0)
        for x in loads: a(x+' '+SC1)
        a('s_add_u32 s38, s38, 1\ns_waitcnt vmcnt(0)')
        chk(regs)
        a(f'''s_cmp_gt_u32 s38, 0x40000
        s_cbranch_scc1 {l1}
        s_nop 2
        s_cmp_eq_u64 vcc, 0
        s_cbranch_scc1 {l1}
        s_sleep {SLP}
        s_branch {l0}''')
        a.label(l1)
        return
    n=len(loads); lb=[shift_load(x,delta) for x in loads]; rb=[r+delta for r in regs]
    a('s_mov_b32 s38, 0')
    for x in loads: a(x+' '+SC1)
    a('s_sleep 2')
    a.label(l0)
    for x in lb: a(x+' '+SC1)
    a(f's_add_u32 s38, s38, 1\ns_waitcnt vmcnt({n})')
    chk(regs)
    a(f'''s_cmp_gt_u32 s38, 0x40000
    s_cbranch_scc1 {l1}
    s_nop 2
    s_cmp_eq_u64 vcc, 0
    s_cbranch_scc1 {l1}''')
    for x in loads: a(x+' '+SC1)
    a(f's_waitcnt vmcnt({n})')
    chk(rb)
    a(f'''s_nop 4
    s_cmp_eq_u64 vcc, 0
    s_cbranch_scc0 {l0}
    s_waitcnt vmcnt(0)''')
    for r,q in zip(regs,rb): a(f'v_mov_b32 v{r}, v{q}')
    a.label(l1)
    a('s_waitcnt vmcnt(0)')
def poll_dbg(word,val):
    l0=L('WA'); l1=L('WD')
    a('s_mov_b32 s38, 0\nv_mov_b32 v71, 0')
    a.label(l0)
    a(f'''buffer_load_dword v70, v71, {SD}, 0 offen offset:{4*word} {SC1}
    s_add_u32 s38, s38, 1
    s_waitcnt vmcnt(0)
    v_readfirstlane_b32 s3, v70
    s_cmp_gt_u32 s38, 0x40000
    s_cbranch_scc1 {l1}
    s_cmp_ge_u32 s3, {val}
    s_cbranch_scc1 {l1}
    s_sleep {DSL}
    s_branch {l0}''')
    a.label(l1)
def red8_w(acc, off):
    c0,c1=halve8(acc)
    a.nop(2)
    dpp('v_add_f32',c0,c0,c0,'row_ror:8'); dpp('v_add_f32',c1,c1,c1,'row_ror:8')
    a(f'ds_write_b64 v{VRED}, v[{c0}:{c1}] offset:{off}\ns_waitcnt lgkmcnt(0)')
BAR='s_barrier'

a.L.append(f'.globl {KN}\n.p2align 8\n.type {KN},@function\n{KN}:')
if TS:
    a(f's_memrealtime s[100:101]\ns_waitcnt lgkmcnt(0)\nv_mov_b32 v{TSV}, s100\nv_mov_b32 v{TSV+1}, s101')
    for i in range(TSV+2,TSV+12): a(f'v_mov_b32 v{i}, 0')
DBGT=os.environ.get('DBGT','0')=='1'
if DBGT: a('s_memrealtime s[72:73]')
a(f'''s_cmp_ge_u32 s2, 256
s_cbranch_scc1 K_END
s_load_dwordx16 s[40:55], s[0:1], 0
s_load_dwordx16 s[56:71], s[0:1], 64
v_lshrrev_b32 v1, 6, v0
v_lshrrev_b32 v4, 3, v0
v_readfirstlane_b32 s39, v1
v_and_b32 v5, 7, v0
s_lshr_b32 s30, s2, 3
s_and_b32 s31, s2, 7
s_and_b32 s32, s2, 3
s_lshr_b32 s33, s2, 2
s_cmp_ge_u32 s39, 8
s_cbranch_scc1 AUX''')
a(f'''s_lshl_b32 s3, s32, 7
v_add_u32 v6, s3, v4
v_lshlrev_b32 v7, 1, v6
v_mul_u32_u24 v8, 0x1800, v6
v_lshl_add_u32 v8, v5, 4, v8
s_lshl_b32 s3, s33, 7
v_add_u32 v8, s3, v8
s_mov_b32 s34, 393216
v_lshlrev_b32 v9, 13, v6
v_lshl_add_u32 v9, v5, 4, v9
s_lshl_b32 s3, s30, 8
s_bfe_u32 s28, s2, 0x10002
s_lshl_b32 s28, s28, 7
s_add_u32 s3, s3, s28
v_add_u32 v9, s3, v9
s_mov_b32 s35, 0x80000
v_lshlrev_b32 v10, 13, v4
v_lshl_add_u32 v10, v5, 5, v10
s_lshl_b32 s3, s31, 19
s_lshl_b32 s28, s30, 8
s_add_u32 s74, s3, s28
v_lshlrev_b32 v12, 1, v0
s_lshl_b32 s3, s39, 8
v_lshlrev_b32 v{VRED}, 5, v5
v_add_u32 v{VRED}, s3, v{VRED}
v_bfe_u32 v2, v0, 4, 1
v_lshl_add_u32 v{VRED}, v2, 3, v{VRED}
v_bfe_u32 v2, v0, 5, 1
v_lshl_add_u32 v{VRED}, v2, 4, v{VRED}
s_and_b32 s77, s2, 63
s_lshr_b32 s78, s2, 6
v_and_b32 v1, 63, v0
v_lshrrev_b32 v2, 3, v1
v_and_b32 v3, 7, v1
v_xor_b32 v3, v3, v2
v_lshlrev_b32 v3, 4, v3
v_lshl_add_u32 v{VDMA}, v2, 10, v3
s_lshl_b32 s3, s39, 7
s_lshl_b32 s29, s77, 16
s_add_u32 s29, s29, s3
s_mul_i32 s79, s39, {REG}
s_add_u32 s79, s79, {RB}
s_sub_u32 s76, s2, {G0}
s_waitcnt lgkmcnt(0)''')
srdp(S_WS,15,WSBYTES); srdp(S_X,0,1024); srdp(S_A,12,3145728); srdp(S_B,11,1024)
a('s_cmp_lt_u32 s2, 192\ns_cbranch_scc1 C_MLD\ns_cmp_ge_u32 s2, 208\ns_cbranch_scc1 C_NOM')
srdp(S_DBG,14,256)
a(f'''s_sub_u32 s28, s2, 192
v_lshlrev_b32 v1, 4, v0
v_mov_b32 v16, -1
v_mov_b32 v17, -1
v_mov_b32 v18, -1
v_mov_b32 v19, -1
v_mov_b32 v20, 1
v_mov_b32 v21, 0
s_lshl_b32 s3, s28, 13
s_cmp_ge_u32 s28, 6
s_cbranch_scc1 C_INIT2
buffer_store_dwordx4 v[16:19], v1, {WS}, s3 offen {SC1}
s_waitcnt vmcnt(0)''')
nstamp('i_ack')
a(f'''s_barrier
v_cmp_eq_u32 vcc, 0, v0
s_and_saveexec_b64 s[36:37], vcc
s_lshl_b32 s24, s28, 2
buffer_store_dword v20, v21, {SD}, s24 offen offset:128 {SC1}
s_mov_b64 exec, s[36:37]''')
if TS and 'i_at' in NST: a('s_waitcnt vmcnt(0)')
nstamp('i_at')
a.label('C_INIT2')
a(f'''s_lshl_b32 s3, s28, 15
s_add_u32 s3, s3, 0x10000
buffer_store_dwordx4 v[16:19], v1, {WS}, s3 offen {SC1}
s_add_u32 s3, s3, 8192
buffer_store_dwordx4 v[16:19], v1, {WS}, s3 offen {SC1}
s_add_u32 s3, s3, 8192
buffer_store_dwordx4 v[16:19], v1, {WS}, s3 offen {SC1}
s_add_u32 s3, s3, 8192
buffer_store_dwordx4 v[16:19], v1, {WS}, s3 offen {SC1}
s_waitcnt vmcnt(0)
s_barrier
v_cmp_eq_u32 vcc, 0, v0
s_and_saveexec_b64 s[36:37], vcc
buffer_atomic_add v20, v21, {SD}, 0 offen
s_mov_b64 exec, s[36:37]
s_branch C_NOM''')
a.label('C_MLD')
a(f'''buffer_load_ushort v24, v7, {SB}, 0 offen
buffer_load_ushort v25, v7, {SB}, 0 offen offset:128
buffer_load_dwordx4 v[32:35], v8, {SA}, 0 offen
buffer_load_dwordx4 v[36:39], v8, {SA}, s34 offen''')
a.label('C_NOM')
srdp(S_A,2,4194304); srdp(S_B,3,4194304); srdp(S_C,1,4194304)
def wqload(part=3):
    if part&1:
        srdp(S_A,2,4194304)
        a(f'''buffer_load_dwordx4 v[{WQ}:{WQ+3}], v9, {SA}, 0 offen
        buffer_load_dwordx4 v[{WQ+4}:{WQ+7}], v9, {SA}, s35 offen''')
    if part&2:
        srdp(S_B,3,4194304)
        a(f'''buffer_load_dwordx4 v[{WUK}:{WUK+3}], v10, {SB}, s74 offen
        buffer_load_dwordx4 v[{WUK+4}:{WUK+7}], v10, {SB}, s74 offen offset:16''')
if WQL: a('s_cmp_lt_u32 s2, 192\ns_cbranch_scc1 C_NOWQ')
wqload()
if WQL: a.label('C_NOWQ')
a(f'buffer_load_ushort v{XE}, v12, {SX}, 0 offen')
srdp(S_A,10,1024)
a(f'buffer_load_ushort v{B2}, v12, {SA}, 0 offen')
def dma(lo,hi):
    for i in range(lo,hi):
        a(f's_add_u32 m0, s79, {1024*i}\ns_add_u32 s3, s29, {8192*i}\nbuffer_load_dwordx4 v{VDMA}, {SC}, s3 offen lds')
def stage_uv():
    srdp(S_A,4,4194304); srdp(S_B,5,4194304)
    a(f'''v_lshrrev_b32 v4, 3, v0
    v_and_b32 v5, 7, v0
    v_lshlrev_b32 v10, 13, v4
    v_lshl_add_u32 v10, v5, 5, v10
    buffer_load_dwordx4 v[{WUV}:{WUV+3}], v10, {SA}, s74 offen
    buffer_load_dwordx4 v[{WUV+4}:{WUV+7}], v10, {SA}, s74 offen offset:16''')
def stage_o():
    a(f'''s_lshr_b32 s3, s2, 5
    s_lshl_b32 s3, s3, 19
    s_and_b32 s28, s2, 7
    s_lshl_b32 s28, s28, 7
    s_add_u32 s3, s3, s28
    s_bfe_u32 s28, s2, 0x20003
    s_lshl_b32 s28, s28, 5
    s_add_u32 s3, s3, s28
    v_lshrrev_b32 v11, 1, v0
    v_lshlrev_b32 v11, 10, v11
    v_and_b32 v15, 1, v0
    v_lshl_add_u32 v11, v15, 4, v11
    s_add_u32 s28, s3, 0x40000
    buffer_load_dwordx4 v[{WO}:{WO+3}], v11, {SB}, s3 offen
    buffer_load_dwordx4 v[{WO+4}:{WO+7}], v11, {SB}, s28 offen''')
def gload1():
    srdp(S_A,7,512*2752)
    a(f'''v_lshrrev_b32 v6, 2, v0
    v_mul_u32_u24 v6, 2752, v6
    v_and_b32 v15, 3, v0
    v_lshl_add_u32 v6, v15, 4, v6
    s_lshl_b32 s28, s76, 6''')
    for q in range(4):
        a(f's_add_u32 s3, s28, {2752*128*q}\nbuffer_load_dwordx4 v[{W1+4*q}:{W1+4*q+3}], v6, {SA}, s3 offen')
    srdp(S_A,8,2752)
    a(f'''v_and_b32 v6, 31, v0
    v_lshlrev_b32 v6, 1, v6
    buffer_load_ushort v{B1}, v6, {SA}, s28 offen''')
def gload2():
    srdp(S_A,9,1376*1024)
    a(f'''v_and_b32 v6, 255, v0
    v_lshlrev_b32 v6, 2, v6
    s_lshl_b32 s3, s76, 15
    s_lshr_b32 s28, s39, 2
    s_lshl_b32 s28, s28, 14
    s_add_u32 s3, s3, s28''')
    for d in range(16):
        if d%4==0 and d>0: a('s_add_u32 s3, s3, 4096')
        a(f'buffer_load_dword v{W2+d}, v6, {SA}, s3 offen offset:{1024*(d%4)}')
G2=os.environ.get('G2','d')
G1=os.environ.get('G1','t0')
ND=8 if DMA0 else 0
if DMA0: dma(0,8)
if G1=='t0':
    a(f's_cmp_lt_u32 s2, {G0}\ns_cbranch_scc1 C_NOG')
    gload1()
    if G2=='t0': gload2()
    a(f's_waitcnt vmcnt({(23 if G2=="t0" else 7)+ND})')
    a.label('C_NOG')
GSK=G0 if G1=='t0' else 1000
if EDMA:
    a('s_cmp_lt_u32 s2, 192\ns_cbranch_scc1 C_NOED')
    dma(0,8)
    a('s_waitcnt vmcnt(8)')
    a.label('C_NOED')
    GSK=192
a('s_cmp_ge_u32 s2, 192\ns_cbranch_scc1 C_M_DONE\ns_waitcnt vmcnt(%d)'%(8+ND-(4 if WQL else 0)))
for i in range(2): a(f'v_lshlrev_b32 v{24+i}, 16, v{24+i}\nv_mul_f32 v{28+i}, 0xbfb8aa3b, v{24+i}')
for i in range(2): a(f'v_exp_f32 v{28+i}, v{28+i}')
a('s_nop 0')
for i in range(2): a(f'v_add_f32 v{28+i}, 1.0, v{28+i}')
for i in range(2): a(f'v_rcp_f32 v{28+i}, v{28+i}')
a('s_nop 0')
for i in range(2): a(f'v_mul_f32 v{24+i}, v{24+i}, v{28+i}')
bf16r2(24,25,24,25,28)
acc=list(range(48,56))
a(f's_waitcnt vmcnt({6+ND-(4 if WQL else 0)})')
if WQLM=='2': wqload(1)
mul8(acc,32,24,True); mul8(acc,36,25,False)
red8_w(acc,0)
a.label('C_M_DONE')
nstamp('m_pre')
a(BAR)
nstamp('m_done')
if not DMA0:
    a(BAR)
    if WQL:
        a('s_cmp_ge_u32 s2, 192\ns_cbranch_scc1 C_NOWQ2')
        wqload(2 if WQLM=='2' else 3)
        a('s_nop 0')
        a.label('C_NOWQ2')
    if EDMA: a('s_cmp_ge_u32 s2, 192\ns_cbranch_scc1 C_ND1')
    dma(0,4)
    if EDMA: a.label('C_ND1')
a(f's_cmp_ge_u32 s2, {GSK}\ns_cbranch_scc1 CW1\ns_waitcnt vmcnt({12 if DMA0 else (6 if WQL else 8)})')
a.label('CW1')
a('v_lshlrev_b32 v3, 2, v4')
a(BAR)
nstamp('a_gath')
a('ds_read_b32 v40, v3 offset:4096\nds_read_b32 v41, v3 offset:4352\ns_waitcnt lgkmcnt(0)')
mul8(acc,WQ,40,True); mul8(acc,WQ+4,41,False)
red8_w(acc,2048)
a(BAR)
nstamp('a_done')
if not DMA0:
    a(BAR)
    if EDMA: a('s_cmp_ge_u32 s2, 192\ns_cbranch_scc1 C_ND2')
    dma(4,8)
    if EDMA: a.label('C_ND2')
a(f's_cmp_ge_u32 s2, {GSK}\ns_cbranch_scc1 CW2\ns_waitcnt vmcnt({8 if WQL else 10})')
a.label('CW2')
a('v_lshlrev_b32 v1, 6, v5')
a(BAR)
nstamp('b_gath')
for q in range(4): a(f'ds_read_b128 v[{16+4*q}:{19+4*q}], v1 offset:{4608+16*q}')
a('s_waitcnt lgkmcnt(0)')
for k in range(8):
    a(f'v_lshlrev_b32 v42, 16, v{WUK+k}\nv_and_b32 v43, 0xffff0000, v{WUK+k}')
    if k==0: a('v_mul_f32 v48, v16, v42\nv_mul_f32 v49, v17, v43')
    else: a(f'v_fmac_f32 v48, v{16+2*k}, v42\nv_fmac_f32 v49, v{17+2*k}, v43')
a('v_add_f32 v48, v48, v49')
for ctl in ['quad_perm:[1,0,3,2]','quad_perm:[2,3,0,1]','row_half_mirror']:
    a.nop(2); dpp('v_add_f32',48,48,48,ctl)
a(f'''v_cvt_pk_bf16_f32 v49, v48, v48
v_and_b32 v50, 0xffff0000, v49
v_sub_f32 v48, v48, v50
v_cvt_pk_bf16_f32 v48, v48, v48
v_and_b32 v49, 0xffff, v49
v_lshl_or_b32 v48, v48, 16, v49
v_lshlrev_b32 v1, 2, v4
s_lshl_b32 s3, s2, 8
s_add_u32 s3, s3, {QA}
v_cmp_eq_u32 vcc, 0, v5
s_and_saveexec_b64 s[36:37], vcc
buffer_store_dword v48, v1, {WS}, s3 offen {SC1}
s_mov_b64 exec, s[36:37]''')
a(BAR)
nstamp('b_done')
if UVC=='0' and not AXL: stage_uv()
a(f'''v_and_b32 v1, 63, v0
v_lshrrev_b32 v2, 4, v1
v_and_b32 v3, 15, v1
v_min_u32 v6, 7, v3
v_lshlrev_b32 v6, 11, v6
v_lshl_add_u32 v6, v2, 5, v6
s_lshl_b32 s24, s78, 14
s_lshl_b32 s26, s39, 8
s_add_u32 s24, s24, s26
s_add_u32 s24, s24, {QA}
v_and_b32 v7, 7, v3
v_xor_b32 v7, v7, v2
v_lshlrev_b32 v7, 4, v7
v_lshl_add_u32 v7, v3, 7, v7
v_add_u32 v7, s79, v7
v_xor_b32 v8, 64, v7
v_and_b32 v9, 7, v3
v_lshl_add_u32 v11, v2, 3, v9
v_lshlrev_b32 v11, 4, v11
s_lshl_b32 s3, s39, 11
v_add_u32 v12, s3, v11
v_lshrrev_b32 v13, 2, v3
v_lshl_add_u32 v13, v2, 2, v13
v_and_b32 v116, 7, v13
v_bfe_u32 v9, v1, 1, 1
v_xor_b32 v116, v116, v9
v_lshlrev_b32 v116, 4, v116
v_lshl_add_u32 v116, v13, 7, v116
v_and_b32 v9, 1, v1
v_lshl_add_u32 v116, v9, 3, v116
v_add_u32 v116, s79, v116
v_lshlrev_b32 v117, 7, v3
v_lshl_add_u32 v117, v2, 3, v117
v_add_u32 v117, s79, v117
v_lshlrev_b32 v118, 4, v1
v_add_u32 v118, s79, v118
v_lshrrev_b32 v115, 3, v1
v_lshlrev_b32 v115, 16, v115
v_and_b32 v13, 7, v1
v_lshl_add_u32 v115, v13, 4, v115
s_lshl_b32 s72, s78, 19
s_lshl_b32 s26, s77, 10
s_add_u32 s72, s72, s26
s_lshl_b32 s26, s39, 7
s_add_u32 s72, s72, s26
s_add_u32 s72, s72, {PART}
s_lshl_b32 s73, s78, 12
s_lshl_b32 s26, s77, 3
s_add_u32 s73, s73, s26
s_add_u32 s73, s73, {STAT}
v_lshlrev_b32 v114, 9, v3
s_mov_b32 s25, 0x05040100
s_mov_b32 s26, 0x07060302''')
D1=56
gather([f'buffer_load_dwordx4 v[{16+4*q}:{19+4*q}], v6, {WS}, s24 offen offset:{(q>>1)*128+(q&1)*16}' for q in range(4)], range(16,32), 16)
nstamp('c_gath')
a('v_mov_b32 v14, v11')
if UVC=='1': stage_uv(); stage_o()
if UVC in '23': stage_uv()
a('v_mov_b32 v11, v14')
for s_ in range(2):
    for k in range(4):
        x0=16+8*s_+2*k
        a(f'v_perm_b32 v{32+4*s_+k}, v{x0+1}, v{x0}, s25\nv_perm_b32 v{40+4*s_+k}, v{x0+1}, v{x0}, s26')
for T in range(4):
    base=16+8*(T&1)
    a(f'ds_read_b128 v[{base}:{base+3}], v7 offset:{2048*T}\nds_read_b128 v[{base+4}:{base+7}], v8 offset:{2048*T}')
    for s_ in range(2):
        a(f's_waitcnt lgkmcnt({1-s_})')
        a(f'v_mfma_f32_16x16x32_bf16 v[{D1+4*T}:{D1+4*T+3}], v[{base+4*s_}:{base+4*s_+3}], v[{32+4*s_}:{35+4*s_}], '+('0' if s_==0 else f'v[{D1+4*T}:{D1+4*T+3}]'))
        a(f'v_mfma_f32_16x16x32_bf16 v[{D1+4*T}:{D1+4*T+3}], v[{base+4*s_}:{base+4*s_+3}], v[{40+4*s_}:{43+4*s_}], v[{D1+4*T}:{D1+4*T+3}]')
a('v_cmp_gt_u32 vcc, 8, v3\ns_and_saveexec_b64 s[36:37], vcc')
a.nop(7)
for T in range(4): a(f'ds_write_b128 v12, v[{D1+4*T}:{D1+4*T+3}] offset:{XCH+512*T}')
a('s_mov_b64 exec, s[36:37]\ns_waitcnt lgkmcnt(0)')
a(BAR)
nstamp('c_g1')
P0=16
a(f'''s_lshr_b32 s3, s39, 1
s_lshl_b32 s3, s3, 9
s_and_b32 s28, s39, 1
s_lshl_b32 s28, s28, 3
s_add_u32 s3, s3, s28
v_add_u32 v12, s3, v11''')
for w in range(8): a(f'ds_read_b64 v[{16+2*w}:{17+2*w}], v12 offset:{XCH+w*2048}')
a(f'v_add_u32 v12, {SC2}, v12\nv_add_u32 v11, {SC2}, v11\ns_waitcnt lgkmcnt(0)')
for k in range(2):
    a(f'''v_add_f32 v{16+k}, v{16+k}, v{18+k}
    v_add_f32 v{20+k}, v{20+k}, v{22+k}
    v_add_f32 v{24+k}, v{24+k}, v{26+k}
    v_add_f32 v{28+k}, v{28+k}, v{30+k}
    v_add_f32 v{16+k}, v{16+k}, v{20+k}
    v_add_f32 v{24+k}, v{24+k}, v{28+k}
    v_add_f32 v{16+k}, v{16+k}, v{24+k}''')
bf16r2(16,17,16,17,18)
a('v_mul_f32 v16, 0x3db504f3, v16\nv_mul_f32 v17, 0x3db504f3, v17')
bf16r2(16,17,16,17,18)
a('ds_write_b64 v12, v[16:17]\ns_waitcnt lgkmcnt(0)')
a(BAR)
for T in range(4): a(f'ds_read_b128 v[{16+4*T}:{19+4*T}], v11 offset:{512*T}')
a('s_waitcnt lgkmcnt(0)')
nstamp('c_x')
a(f'v_max_f32 v32, v{P0}, v{P0+1}')
for r in range(2,16,2): a(f'v_max3_f32 v32, v32, v{P0+r}, v{P0+r+1}')
for sw in ['v_permlane16_swap_b32','v_permlane32_swap_b32']:
    a(f'v_mov_b32 v33, v32\ns_nop 1\n{sw} v32, v33\ns_nop 1\nv_max_f32 v32, v32, v33')
a(f's_mov_b32 s3, {LOG2E}\nv_mul_f32 v33, s3, v32')
for r in range(16): a(f'v_fma_f32 v{P0+r}, v{P0+r}, s3, -v33')
for r in range(16): a(f'v_exp_f32 v{P0+r}, v{P0+r}')
for kk in range(2):
    for hh in range(2):
        T=2*kk+hh
        a(f'v_cvt_pk_bf16_f32 v{40+4*kk+2*hh}, v{P0+4*T}, v{P0+4*T+1}\nv_cvt_pk_bf16_f32 v{41+4*kk+2*hh}, v{P0+4*T+2}, v{P0+4*T+3}')
nstamp('c_sm')
D2=56
FRG=[72,76,80,84,48,52,16,20]
def rdt(t):
    a(f'v_xor_b32 v13, {t<<5}, v116')
    for kk in range(2):
        f=FRG[t*2+kk]
        a(f'ds_read_b64_tr_b16 v[{f}:{f+1}], v13 offset:{2048*(2*kk)}\nds_read_b64_tr_b16 v[{f+2}:{f+3}], v13 offset:{2048*(2*kk+1)}')
rdt(0); rdt(1); rdt(2)
a(f'v_add_f32 v34, v{P0}, v{P0+1}')
for r in range(2,16): a(f'v_add_f32 v34, v34, v{P0+r}')
rdt(3)
for sw in ['v_permlane16_swap_b32','v_permlane32_swap_b32']:
    a(f'v_mov_b32 v33, v34\ns_nop 1\n{sw} v34, v33\ns_nop 1\nv_add_f32 v34, v34, v33')
for t in range(4):
    for kk in range(2):
        f=FRG[t*2+kk]
        a(f's_waitcnt lgkmcnt({14-2*(t*2+kk)})')
        a(f'v_mfma_f32_16x16x32_bf16 v[{D2+4*t}:{D2+4*t+3}], v[{f}:{f+3}], v[{40+4*kk}:{43+4*kk}], '+('0' if kk==0 else f'v[{D2+4*t}:{D2+4*t+3}]'))
nstamp('c_g2')
a(f'''v_mov_b32 v35, v34
v_mov_b32 v34, v32
v_cmp_gt_u32 vcc, 8, v3
s_and_saveexec_b64 s[36:37], vcc
s_nop 3''')
for t in range(4):
    a(f'v_cvt_pk_bf16_f32 v{16+2*t}, v{D2+4*t}, v{D2+4*t+1}\nv_cvt_pk_bf16_f32 v{17+2*t}, v{D2+4*t+2}, v{D2+4*t+3}')
    a(f'ds_write_b64 v117, v[{16+2*t}:{17+2*t}] offset:{32*t}')
a(f'''s_mov_b64 exec, s[36:37]
s_waitcnt lgkmcnt(0)
ds_read_b128 v[16:19], v118
s_waitcnt lgkmcnt(0)
buffer_store_dwordx4 v[16:19], v115, {WS}, s72 offen {SC1}
v_cmp_gt_u32 vcc, 8, v0
s_and_saveexec_b64 s[36:37], vcc
buffer_store_dwordx2 v[34:35], v114, {WS}, s73 offen {SC1}
s_mov_b64 exec, s[36:37]''')
nstamp('c_st')
a(BAR)
nstamp('c_done')
if UVC in '03' and not AXL: stage_o()
a(f'''v_lshrrev_b32 v4, 3, v0
v_and_b32 v5, 7, v0
v_lshlrev_b32 v6, 10, v4
v_lshl_add_u32 v6, v5, 4, v6
s_lshl_b32 s24, s30, 16
s_lshl_b32 s26, s31, 7
s_add_u32 s24, s24, s26
s_add_u32 s24, s24, {PART}
v_and_b32 v1, 63, v0
v_lshlrev_b32 v7, 3, v1
s_lshl_b32 s25, s30, 9
s_add_u32 s25, s25, {STAT}''')
gather([f'buffer_load_dwordx2 v[40:41], v7, {WS}, s25 offen', f'buffer_load_dwordx4 v[16:19], v6, {WS}, s24 offen'], [40,41,16,17,18,19], 4)
nstamp('d_gath')
if G2=='d':
    a(f's_cmp_lt_u32 s2, {G0}\ns_cbranch_scc1 C_NOG2')
    gload2()
    a.label('C_NOG2')
if UVC=='2': stage_o()
a('v_mov_b32 v42, v40')
wave_allreduce('v_max_f32',[42],[43])
a(f'''v_sub_f32 v40, v40, v42
v_mul_f32 v40, {LOG2E}, v40
v_exp_f32 v40, v40
s_nop 0
v_mul_f32 v41, v41, v40''')
wave_allreduce('v_add_f32',[41],[43])
a('''v_rcp_f32 v41, v41
v_lshlrev_b32 v42, 2, v4
v_mul_f32 v40, v40, v41
s_nop 0
ds_bpermute_b32 v40, v42, v40
s_waitcnt lgkmcnt(0)''')
mul8(acc,16,40,True)
red8_w(acc,0)
a('v_lshlrev_b32 v3, 2, v4')
a(BAR)
if AXL:
    a(f'''v_lshlrev_b32 v6, 8, v4
    v_lshl_add_u32 v6, v5, 5, v6
    v_add_u32 v6, {LUV}, v6
    ds_read_b128 v[{WUV}:{WUV+3}], v6
    ds_read_b128 v[{WUV+4}:{WUV+7}], v6 offset:16''')
sum8_lds(0,256,40,3)
acc16=list(range(16,32))
mulN(acc16,WUV,8,40)
halve16(acc16,['row_ror:8'])
a(f'''s_lshl_b32 s3, s39, 9
v_lshlrev_b32 v1, 6, v5
v_add_u32 v1, s3, v1
v_bfe_u32 v2, v0, 4, 2
v_lshl_add_u32 v1, v2, 4, v1
ds_write_b128 v1, v[16:19] offset:4096
s_waitcnt lgkmcnt(0)''')
a(BAR)
nstamp('d_done')
a(f'''v_lshrrev_b32 v1, 7, v0
v_lshlrev_b32 v1, 12, v1
v_and_b32 v2, 127, v0
v_lshl_add_u32 v1, v2, 2, v1
s_lshr_b32 s3, s2, 5
s_lshl_b32 s3, s3, 14
s_add_u32 s3, s3, {CP}''')
if CPT:
    a('v_lshlrev_b32 v1, 5, v0')
    gather([f'buffer_load_dwordx4 v[16:19], v1, {WS}, s3 offen', f'buffer_load_dwordx4 v[20:23], v1, {WS}, s3 offen offset:16'], range(16,24))
else:
    gather([f'buffer_load_dword v{16+j}, v1, {WS}, s3 offen offset:{512*j}' for j in range(8)], range(16,24), 8)
nstamp('e_gath')
if G2=='e':
    a(f's_cmp_lt_u32 s2, {G0}\ns_cbranch_scc1 C_NOG2')
    gload2()
    a.label('C_NOG2')
sum8r(16)
bf16r(16,16)
a(f'''v_lshlrev_b32 v1, 2, v0
ds_write_b32 v1, v16 offset:8192
v_lshrrev_b32 v3, 1, v0
v_lshlrev_b32 v3, 2, v3
s_waitcnt lgkmcnt(0)''')
a(BAR)
if AXL:
    a(f'''v_lshlrev_b32 v6, 4, v0
    v_add_u32 v6, {LWO}, v6
    ds_read_b128 v[{WO}:{WO+3}], v6
    ds_read_b128 v[{WO+4}:{WO+7}], v6 offset:8192''')
a('ds_read_b32 v40, v3 offset:8192\nds_read_b32 v41, v3 offset:9216\ns_waitcnt lgkmcnt(0)')
mul8(acc,WO,40,True); mul8(acc,WO+4,41,False)
c0,c1=halve8(acc)
for ctl in ['row_ror:8','row_ror:4','row_ror:2']:
    a.nop(2); dpp('v_add_f32',c0,c0,c0,ctl); dpp('v_add_f32',c1,c1,c1,ctl)
a(f'''s_lshl_b32 s3, s39, 6
v_and_b32 v5, 1, v0
v_lshlrev_b32 v3, 5, v5
v_add_u32 v3, s3, v3
v_bfe_u32 v5, v0, 4, 1
v_lshl_add_u32 v3, v5, 3, v3
v_bfe_u32 v5, v0, 5, 1
v_lshl_add_u32 v3, v5, 4, v3
ds_write_b64 v3, v[{c0}:{c1}] offset:12288
s_waitcnt lgkmcnt(0)''')
a(BAR)
nstamp('e_done')
a(f'''s_cmp_lt_u32 s2, {H0}
s_cbranch_scc1 K_TS
v_lshlrev_b32 v1, 4, v0
v_add_u32 v1, {MGL}, v1
ds_read_b128 v[{MG}:{MG+3}], v1
s_cmp_lt_u32 s2, {G0}
s_cbranch_scc1 H_GO''')
if G1=='e': gload1()
a(f'''v_lshlrev_b32 v1, 2, v0
s_mov_b32 s3, {OP}
s_add_u32 s24, s3, 4096
s_add_u32 s25, s3, 8192
s_add_u32 s26, s3, 12288''')
if OPT:
    a('v_lshlrev_b32 v2, 5, v0')
    gather([f'buffer_load_dwordx4 v[16:19], v2, {WS}, s3 offen', f'buffer_load_dwordx4 v[20:23], v2, {WS}, s3 offen offset:16'], range(16,24))
else:
    gather([f'buffer_load_dword v{16+k}, v1, {WS}, s{3 if k<2 else 23+k//2} offen offset:{2048*(k%2)}' for k in range(8)], range(16,24), 8)
nstamp('g_gath')
if G2=='g': gload2()
sum8r(16)
bf16r(16,16)
a(f's_waitcnt lgkmcnt(0)\nv_mul_f32 v16, v16, v{MG}')
bf16r(16,16)
a(f'v_lshlrev_b32 v17, 16, v{XE}\nv_add_f32 v16, v16, v17')
bf16r(16,16)
a(f's_lshl_b32 s3, s39, 3\nv_mov_b32 v3, s3\nv_mov_b32 v2, 0')
def ln_stat_wg(x,slot,extra=None,extra2=None):
    a(f'v_mov_b32 v44, v{x}\nv_mul_f32 v45, v{x}, v{x}')
    wave_allreduce('v_add_f32',[44,45],[46,47])
    a(f'ds_write_b64 v3, v[44:45] offset:{slot}')
    if extra: a(extra)
    a(f'''s_waitcnt lgkmcnt(0)
    s_barrier
    ds_read_b128 v[20:23], v2 offset:{slot}
    ds_read_b128 v[24:27], v2 offset:{slot+16}
    ds_read_b128 v[28:31], v2 offset:{slot+32}
    ds_read_b128 v[32:35], v2 offset:{slot+48}''')
    if extra2: a(extra2)
    a(f'''s_waitcnt lgkmcnt(0)
    v_add_f32 v20, v20, v22
    v_add_f32 v21, v21, v23
    v_add_f32 v24, v24, v26
    v_add_f32 v25, v25, v27
    v_add_f32 v28, v28, v30
    v_add_f32 v29, v29, v31
    v_add_f32 v32, v32, v34
    v_add_f32 v33, v33, v35
    v_add_f32 v20, v20, v24
    v_add_f32 v21, v21, v25
    v_add_f32 v28, v28, v32
    v_add_f32 v29, v29, v33
    v_add_f32 v44, v20, v28
    v_add_f32 v45, v21, v29
    v_mul_f32 v44, 0x3b000000, v44
    v_mul_f32 v45, 0x3b000000, v45
    v_fma_f32 v45, -v44, v44, v45
    v_max_f32 v45, 0, v45''')
    ln_fin(44,45,46)
ln_stat_wg(16,8192)
a('v_sub_f32 v16, v16, v44')
bf16r(16,16)
div1(20,16,45,22,23)
bf16r(16,20)
a(f'v_mul_f32 v16, v16, v{MG+2}')
bf16r(16,16)
a(f'v_add_f32 v16, v16, v{MG+1}')
bf16r(16,16)
a('v_lshrrev_b32 v5, 2, v0\nv_lshlrev_b32 v5, 2, v5')
ln_stat_wg(16,8320,'ds_write_b32 v1, v16','\n'.join(f'ds_read_b32 v{36+q}, v5 offset:{512*q}' for q in range(4)))
nstamp('g_ln')
for q in range(4): a(f'v_sub_f32 v{36+q}, v{36+q}, v44')
bf16r2(36,37,36,37,20); bf16r2(38,39,38,39,20)
a('v_rcp_f32 v20, v45\ns_nop 0')
for q in range(4): a(f'v_mul_f32 v{24+q}, v{36+q}, v20')
for q in range(4): a(f'v_fma_f32 v{28+q}, -v{24+q}, v45, v{36+q}')
for q in range(4): a(f'v_fma_f32 v{28+q}, v{28+q}, v20, v{24+q}')
bf16r2(20,21,28,29,24); bf16r2(22,23,30,31,24)
if G2=='g': a('s_waitcnt vmcnt(16)')
for q in range(4): mul8(acc,W1+4*q,20+q,q==0)
c0,c1=halve8(acc)
for ctl in ['row_ror:8','row_ror:4']:
    a.nop(2); dpp('v_add_f32',c0,c0,c0,ctl); dpp('v_add_f32',c1,c1,c1,ctl)
a(f'''s_lshl_b32 s3, s39, 7
v_and_b32 v5, 3, v0
v_lshlrev_b32 v3, 5, v5
v_add_u32 v3, s3, v3
v_bfe_u32 v5, v0, 4, 1
v_lshl_add_u32 v3, v5, 3, v3
v_bfe_u32 v5, v0, 5, 1
v_lshl_add_u32 v3, v5, 4, v3
ds_write_b64 v3, v[{c0}:{c1}] offset:9216
s_lshr_b32 s28, s39, 2
s_lshl_b32 s28, s28, 4
v_add_u32 v3, s28, v0
v_and_b32 v3, 31, v3
v_lshlrev_b32 v3, 2, v3
ds_bpermute_b32 v45, v3, v{B1}
s_waitcnt lgkmcnt(0)
s_barrier''')
sum8_lds(9216,128,8,3)
bf16r(8,8)
a('v_lshlrev_b32 v45, 16, v45\nv_add_f32 v8, v8, v45')
bf16r(8,8)
a('''v_mul_f32 v9, v8, v8
v_mov_b32 v10, 0x3d372713
v_fma_f32 v9, v9, v10, 1.0
v_mul_f32 v9, v9, v8
v_mul_f32 v9, 0xc0135761, v9
v_exp_f32 v9, v9
s_nop 0
v_add_f32 v9, 1.0, v9
v_rcp_f32 v9, v9
s_nop 0
v_mul_f32 v8, v8, v9''')
bf16r(8,8)
a('s_nop 0')
for k in range(16): a(f'v_readlane_b32 s{80+k}, v8, {k}')
a('s_waitcnt vmcnt(0)')
for d in range(16):
    a(f'v_lshlrev_b32 v44, 16, v{W2+d}\nv_and_b32 v45, 0xffff0000, v{W2+d}')
    op='v_mul_f32' if d==0 else 'v_fmac_f32'
    a(f'{op} v42, s{80+d}, v44\n{op} v43, s{80+d}, v45')
a(f'''v_and_b32 v1, 255, v0
v_lshlrev_b32 v1, 3, v1
s_cmp_lt_u32 s39, 4
s_cbranch_scc1 G_LO
ds_write_b64 v1, v[42:43] offset:10240
s_waitcnt lgkmcnt(0)
s_barrier
s_branch K_TS''')
a.label('G_LO')
a(f'''s_barrier
ds_read_b64 v[44:45], v1 offset:10240
s_lshl_b32 s3, s76, 11
s_add_u32 s3, s3, {O2P}
s_waitcnt lgkmcnt(0)
v_add_f32 v42, v42, v44
v_add_f32 v43, v43, v45
buffer_store_dwordx2 v[42:43], v1, {WS}, s3 offen {SC1}''')
nstamp('g_done')
a('s_branch K_TS')
a.label('H_GO')
a(f'''s_sub_u32 s28, s2, {H0}
v_lshrrev_b32 v4, 4, v0
v_and_b32 v5, 15, v0
v_lshlrev_b32 v1, 11, v4
v_lshl_add_u32 v1, v5, 4, v1
s_lshl_b32 s3, s28, 8
s_add_u32 s24, s3, {OP}
s_add_u32 s25, s3, {O2P}
s_add_u32 s26, s25, 65536''')
for r in list(range(16,20))+list(range(24,28)): a(f'v_mov_b32 v{r}, 0')
if OPT:
    a(f'''s_cmp_lg_u32 s39, 0
    s_cbranch_scc1 H_SK0
    v_lshlrev_b32 v2, 5, v0
    s_lshl_b32 s3, s28, 11
    s_add_u32 s3, s3, {OP}''')
    gather([f'buffer_load_dwordx4 v[48:51], v2, {WS}, s3 offen', f'buffer_load_dwordx4 v[52:55], v2, {WS}, s3 offen offset:16'], range(48,56))
    sum8r(48)
else:
    a('s_cmp_ge_u32 s39, 2\ns_cbranch_scc1 H_SK0')
    gather([f'buffer_load_dwordx4 v[16:19], v1, {WS}, s24 offen'], range(16,20))
a.label('H_SK0')
def red4(regs,off):
    for sw in ['v_permlane16_swap_b32','v_permlane32_swap_b32']:
        for i,r in enumerate(regs): a(f'v_mov_b32 v{44+i}, v{r}')
        a.nop(1)
        for i,r in enumerate(regs): a(f'{sw} v{r}, v{44+i}')
        a.nop(1)
        for i,r in enumerate(regs): a(f'v_add_f32 v{r}, v{r}, v{44+i}')
    a(f's_lshl_b32 s3, s39, 8\nv_lshl_add_u32 v2, v5, 4, s3\nds_write_b128 v2, v[{regs[0]}:{regs[3]}] offset:{off}')
if not OPT: red4([16,17,18,19],0)
a(f'''v_lshlrev_b32 v6, 4, v0
s_waitcnt lgkmcnt(0)
v_mov_b32 v16, v{MG}
v_mov_b32 v17, v{MG+3}
v_lshlrev_b32 v18, 16, v{XE}
v_lshlrev_b32 v19, 16, v{B2}
ds_write_b128 v6, v[16:19] offset:4096
v_cmp_gt_u32 vcc, {NG5-32}, v4
s_and_saveexec_b64 s[34:35], vcc
s_cbranch_execz H_SK''')
gather([f'buffer_load_dwordx4 v[24:27], v1, {WS}, s26 offen'], range(24,28))
a.label('H_SK')
a('s_mov_b64 exec, s[34:35]')
gather([f'buffer_load_dwordx4 v[20:23], v1, {WS}, s25 offen'], range(20,24), 8)
nstamp('h_gath')
for c_ in range(4): a(f'v_add_f32 v{20+c_}, v{20+c_}, v{24+c_}')
red4([20,21,22,23],2048)
a(f'''s_waitcnt lgkmcnt(0)
s_barrier
s_cmp_lg_u32 s39, 0
s_cbranch_scc1 K_TS
s_lshl_b32 s3, s28, 10
v_add_u32 v2, s3, v6
ds_read_b128 v[24:27], v2 offset:4096
v_lshlrev_b32 v1, 2, v0''')
if OPT: a('v_mov_b32 v16, v48')
else: sum8_lds(0,256,16,1)
sum8_lds(2048,256,17,1)
bf16r2(16,17,16,17,20)
a('v_mul_f32 v16, v16, v24\nv_add_f32 v17, v17, v27')
bf16r2(16,17,16,17,20)
a('v_add_f32 v16, v16, v26\nv_mul_f32 v17, v17, v25')
bf16r2(16,17,16,17,20)
srdp(S_A,13,1024)
a(f'''v_add_f32 v16, v16, v17
v_cvt_pk_bf16_f32 v16, v16, v16
v_lshlrev_b32 v1, 1, v0
s_lshl_b32 s3, s28, 7
buffer_store_short v16, v1, {SA}, s3 offen''')
if DBGT:
    srdp(S_DBG,14,256)
    a(f'''s_memrealtime s[100:101]
    s_waitcnt lgkmcnt(0)
    s_sub_u32 s100, s100, s72
    v_mov_b32 v2, s100
    s_lshl_b32 s3, s28, 2
    v_mov_b32 v3, 0
    v_cmp_eq_u32 vcc, 0, v0
    s_and_saveexec_b64 s[36:37], vcc
    buffer_store_dword v2, v3, {SD}, s3 offen offset:16''')
a.label('K_TS')
tsend(); a('s_endpgm')
a.label('AUX')
a(f'''v_subrev_u32 v0, 512, v0
v_and_b32 v11, 63, v0
v_lshlrev_b32 v11, 4, v11
s_lshl_b32 s3, s32, 8
v_lshl_add_u32 v6, v0, 1, s3
s_waitcnt lgkmcnt(0)''')
srdp(S_WS,15,WSBYTES); srdp(S_DBG,14,256); srdp(S_X,0,1024)
a(f'''buffer_load_dwordx4 v[56:59], v11, {SX}, 0 offen
buffer_load_ushort v46, v6, {SX}, 0 offen
s_cmp_lt_u32 s2, 192
s_cbranch_scc1 X_NOINIT
s_cmp_ge_u32 s2, 208
s_cbranch_scc1 X_NOINIT
s_barrier
s_cmp_ge_u32 s2, 198
s_cbranch_scc1 X_NOINIT
s_barrier''')
a.label('X_NOINIT')
a('s_waitcnt vmcnt(0)')
if TLB!='0':
    a(f's_cmp_lg_u32 s39, 9\ns_cbranch_scc1 X_NOTLB\ns_cmp_ge_u32 s2, {TLB}\ns_cbranch_scc1 X_NOTLB\nv_lshlrev_b32 v12, 12, v11')
    for i,(idx,nb) in enumerate([(1,4194304),(4,4194304),(5,4194304),(3,4194304),(7,512*2752),(9,1376*1024)]):
        srdp(S_A,idx,nb)
        a(f'buffer_load_dword v{72+i}, v12, {SA}, 0 offen')
    a.label('X_NOTLB')
x8=list(range(60,68)); unpack8(x8,56)
ln_stats(x8,44,45,47)
a('v_lshlrev_b32 v46, 16, v46\nv_sub_f32 v46, v46, v44')
bf16r(46,46)
div1(18,46,45,20,21)
bf16r(46,18)
a(f'''v_lshlrev_b32 v1, 2, v0
s_cmp_lg_u32 s39, 8
s_cbranch_scc1 X_B1''')
l0=L('WA'); l1=L('WD')
a('s_mov_b32 s38, 0\nv_min_u32 v71, 5, v0\nv_lshlrev_b32 v71, 2, v71')
a.label(l0)
a(f'''buffer_load_dword v70, v71, {SD}, 0 offen offset:128 {SC1}
s_add_u32 s38, s38, 1
s_waitcnt vmcnt(0)
v_cmp_eq_u32 vcc, 0, v70
s_cmp_gt_u32 s38, 0x40000
s_cbranch_scc1 {l1}
s_nop 2
s_cmp_eq_u64 vcc, 0
s_cbranch_scc1 {l1}
s_sleep {DSL}
s_branch {l0}''')
a.label(l1)
a.label('X_B1')
a(BAR)
a(f'''s_cmp_ge_u32 s2, 192
s_cbranch_scc1 X_A
s_cmp_lg_u32 s39, 8
s_cbranch_scc1 X_A''')
sum8_lds(0,256,8,1)
a(f'''s_mul_i32 s3, s32, 12288
s_lshl_b32 s28, s33, 8
s_add_u32 s3, s3, s28
buffer_store_dword v8, v1, {WS}, s3 offen offset:{MODP} {SC1}''')
a.label('X_A')
if not DMA0: a(BAR)
a('v_lshlrev_b32 v6, 1, v6\ns_mov_b32 s25, 12288\ns_mov_b32 s26, 24576\ns_mov_b32 s27, 36864')
gather([f'buffer_load_dword v{16+2*p+k}, v6, {WS}, {"0" if p==0 else "s%d"%(24+p)} offen offset:{MODP+k*2048}' for p in range(4) for k in range(2)], range(16,24), 8)
a('''v_add_f32 v16, v16, v18
v_add_f32 v20, v20, v22
v_add_f32 v17, v17, v19
v_add_f32 v21, v21, v23
v_add_f32 v16, v16, v20
v_add_f32 v17, v17, v21''')
bf16r2(16,17,16,17,47)
a('v_add_f32 v17, 1.0, v17')
bf16r(17,17)
a('v_mul_f32 v18, v46, v17')
bf16r(18,18)
a('v_add_f32 v18, v18, v16')
bf16r(18,18)
a('ds_write_b32 v1, v18 offset:4096\ns_waitcnt lgkmcnt(0)')
a(BAR)
a('s_cmp_lg_u32 s39, 8\ns_cbranch_scc1 X_PI')
poll_dbg(0,16)
a('s_branch X_B3')
a.label('X_PI')
a(f'''v_mov_b32 v16, -1
v_mov_b32 v17, -1
v_mov_b32 v18, -1
v_mov_b32 v19, -1
v_and_b32 v11, 63, v0
v_lshlrev_b32 v11, 4, v11
s_lshr_b32 s3, s2, 6
s_lshl_b32 s3, s3, 19
s_and_b32 s28, s2, 63
s_lshl_b32 s28, s28, 10
s_add_u32 s3, s3, s28
s_add_u32 s3, s3, {PART}''')
for q in range(8):
    a(f'buffer_store_dwordx4 v[16:19], v11, {WS}, s3 offen {SC1}')
    if q<7: a('s_add_u32 s3, s3, 65536')
a.label('X_B3')
a(BAR)
a('s_cmp_lg_u32 s39, 8\ns_cbranch_scc1 X_Q')
sum8_lds(2048,256,8,1)
a(f'''s_lshl_b32 s3, s2, 8
s_add_u32 s3, s3, {QP}
buffer_store_dword v8, v1, {WS}, s3 offen {SC1}''')
a.label('X_Q')
if not DMA0: a(BAR)
a(f'''v_and_b32 v7, 63, v0
v_lshlrev_b32 v7, 2, v7
s_lshl_b32 s3, s30, 11
s_sub_u32 s28, s39, 8
s_lshl_b32 s28, s28, 10
s_add_u32 s3, s3, s28
s_add_u32 s3, s3, {QP}''')
gather([f'buffer_load_dword v{16+m}, v7, {WS}, s3 offen offset:{256*m}' for m in range(4)], range(16,20), 8)
a('''v_add_f32 v16, v16, v17
v_add_f32 v18, v18, v19
v_add_f32 v16, v16, v18''')
bf16r(16,16)
a('ds_write_b32 v1, v16 offset:4608\ns_waitcnt lgkmcnt(0)')
a(BAR)
a(BAR)
if AXL:
    srdp(S_A,4,4194304); srdp(S_B,5,4194304)
    a(f'''v_and_b32 v7, 63, v0
    v_lshrrev_b32 v6, 4, v7
    v_lshlrev_b32 v6, 13, v6
    v_and_b32 v12, 15, v7
    v_lshl_add_u32 v6, v12, 4, v6
    s_sub_u32 s28, s39, 8
    s_lshl_b32 s3, s31, 19
    s_lshl_b32 s24, s30, 8
    s_add_u32 s3, s3, s24
    s_lshl_b32 s24, s28, 18
    s_add_u32 s3, s3, s24
    s_lshl_b32 s25, s28, 13
    s_add_u32 s25, s25, {LUV}''')
    for i in range(8):
        a(f's_add_u32 m0, s25, {1024*i}\ns_add_u32 s24, s3, {32768*i}\nbuffer_load_dwordx4 v6, {SA}, s24 offen lds')
    a(f'''v_lshrrev_b32 v6, 1, v7
    v_lshlrev_b32 v6, 10, v6
    v_and_b32 v12, 1, v7
    v_lshl_add_u32 v6, v12, 4, v6
    s_lshr_b32 s3, s2, 5
    s_lshl_b32 s3, s3, 19
    s_and_b32 s24, s2, 7
    s_lshl_b32 s24, s24, 7
    s_add_u32 s3, s3, s24
    s_bfe_u32 s24, s2, 0x20003
    s_lshl_b32 s24, s24, 5
    s_add_u32 s3, s3, s24
    s_lshl_b32 s24, s28, 18
    s_add_u32 s3, s3, s24
    s_lshl_b32 s25, s28, 13
    s_add_u32 s25, s25, {LWO}''')
    for i in range(8):
        a(f's_add_u32 m0, s25, {1024*i}\ns_add_u32 s24, s3, {32768*i}\nbuffer_load_dwordx4 v6, {SB}, s24 offen lds')
a(BAR)
a(BAR)
a(f'''s_cmp_lt_u32 s2, {H0}
s_cbranch_scc1 X_MGD
s_mov_b32 s24, 4096
s_mov_b32 s25, {4096+12288}
s_mov_b32 s26, {4096+24576}
s_mov_b32 s27, {4096+36864}
v_add_u32 v6, 4096, v1''')
gather([f'buffer_load_dword v{72+16*rr+4*p+k}, v{1 if k<2 else 6}, {WS}, s{24+p} offen offset:{MODP+(k%2)*2048+512*rr}' for rr in range(4) for p in range(4) for k in range(4)], range(72,136))
for rr in range(4):
    b=72+16*rr
    for k in range(4): a(f'v_add_f32 v{b+k}, v{b+k}, v{b+4+k}\nv_add_f32 v{b+8+k}, v{b+8+k}, v{b+12+k}\nv_add_f32 v{b+k}, v{b+k}, v{b+8+k}')
    bf16r2(b,b+1,b,b+1,20); bf16r2(b+2,b+3,b+2,b+3,20)
    a(f'v_add_f32 v{b+2}, 1.0, v{b+2}')
    bf16r(b+2,b+2)
    a(f'v_lshlrev_b32 v7, 2, v1\nv_add_u32 v7, {MGL+2048*rr}, v7\nds_write_b128 v7, v[{b}:{b+3}]')
a('s_waitcnt lgkmcnt(0)')
a.label('X_MGD')
a('s_waitcnt vmcnt(0)')
a(BAR)
a(BAR)
a(BAR)
sum8_lds(4096,512,8,1)
if CPT:
    a(f'''s_lshl_b32 s3, s30, 12
    s_lshl_b32 s28, s31, 2
    s_add_u32 s3, s3, s28
    s_add_u32 s3, s3, {CP}
    v_lshlrev_b32 v2, 5, v0
    buffer_store_dword v8, v2, {WS}, s3 offen {SC1}''')
else:
    a(f'''s_lshl_b32 s3, s2, 9
    s_add_u32 s3, s3, {CP}
    buffer_store_dword v8, v1, {WS}, s3 offen {SC1}''')
a(BAR)
a(BAR)
a(f'''s_cmp_lg_u32 s39, 8
s_cbranch_scc1 X_END
v_cmp_gt_u32 vcc, 16, v0
s_and_saveexec_b64 s[36:37], vcc''')
sum8_lds(12288,64,8,1)
if OPT:
    a(f'''s_lshr_b32 s3, s2, 5
    s_lshl_b32 s3, s3, 2
    s_and_b32 s28, s2, 7
    s_lshl_b32 s28, s28, 11
    s_add_u32 s3, s3, s28
    s_bfe_u32 s28, s2, 0x20003
    s_lshl_b32 s28, s28, 9
    s_add_u32 s3, s3, s28
    s_add_u32 s3, s3, {OP}
    v_lshlrev_b32 v2, 5, v0
    buffer_store_dword v8, v2, {WS}, s3 offen {SC1}''')
else:
    a(f'''s_lshr_b32 s3, s2, 5
    s_lshl_b32 s3, s3, 11
    s_and_b32 s28, s2, 7
    s_lshl_b32 s28, s28, 8
    s_add_u32 s3, s3, s28
    s_bfe_u32 s28, s2, 0x20003
    s_lshl_b32 s28, s28, 6
    s_add_u32 s3, s3, s28
    s_add_u32 s3, s3, {OP}
    buffer_store_dword v8, v1, {WS}, s3 offen {SC1}''')
a.label('X_END')
a.label('K_END'); a('s_endpgm')

KD=f'''.amdhsa_kernel {KN}
  .amdhsa_next_free_vgpr 160
  .amdhsa_next_free_sgpr 102
  .amdhsa_accum_offset 160
  .amdhsa_group_segment_fixed_size 0
  .amdhsa_kernarg_size 128
  .amdhsa_user_sgpr_count 2
  .amdhsa_user_sgpr_kernarg_segment_ptr 1
  .amdhsa_system_sgpr_workgroup_id_x 1
.end_amdhsa_kernel'''
out=[l for l in HDR if l.startswith(';') and '@launch' not in l and 'Override' not in l and 'grid=ceil' not in l]
out.append(f'; @launch grid=(256,1,1) block=(640,1,1) lds={LDS}')
out.append('.amdgcn_target "amdgcn-amd-amdhsa--gfx950"\n.text')
out+=a.L
out.append('.section .rodata,"a"\n.p2align 6\n'+KD)
dst=sys.argv[1] if len(sys.argv)>1 else 'cdna_kernels/%s.s'%NAME
open(dst,'w').write('\n'.join(out)+'\n')
print('wrote',dst,len(a.L),'lines')
```
